```python
import torch

def _softmax(x, axis=-1):
    return torch.softmax(x, dim=axis)
def _gelu(x):
    return torch.nn.functional.gelu(x, approximate="tanh")
def _silu(x):
    return torch.nn.functional.silu(x)
def _sigmoid(x):
    return torch.sigmoid(x)
def _layernorm(x, axis=-1, eps=1e-5):
    m = x.mean(dim=axis, keepdim=True)
    v = x.var(dim=axis, keepdim=True, unbiased=False)
    return (x - m) / torch.sqrt(v + eps)
def _scatter_add(tgt, idx, src, axis=0):
    return tgt.clone().index_add_(axis, idx, src)
def _segment_sum(src, seg, n):
    out = torch.zeros((n,) + src.shape[1:], dtype=src.dtype)
    return out.index_add_(0, seg, src)
def _pad(x, pw):
    flat = tuple(v for pair in reversed(pw) for v in pair)
    return torch.nn.functional.pad(x, flat)

kernel_name = 'gated_mix__sliding_local_dilated__dense_activation_relu__prompt'

def setup_inputs():

    _w = (lambda a: (lambda t: t.to(torch.bfloat16) if t.is_floating_point() else t)(torch.as_tensor(a)))
    def _A_setup():
        B, S, D = 1, 2048, 640
        return {
            "x": _w((lambda *s: torch.randn(*s, dtype=torch.bfloat16) * 0.05)(B, S, D)),
            "wqkv": _w((lambda *s: torch.randn(*s, dtype=torch.bfloat16) * 0.8)(D, 3 * D)),
            "wo": _w((lambda *s: torch.randn(*s, dtype=torch.bfloat16) * 0.05)(D, D)),
        }
    _A_in = _A_setup()

    def _B_setup():
        B, S, D, Dff = 1, 2048, 640, 1728
        return {
            "x": _w((lambda *s: torch.randn(*s, dtype=torch.bfloat16) * 0.05)(B, S, D)),
            "w1": _w((lambda *s: torch.randn(*s, dtype=torch.bfloat16) * 0.1)(D, Dff)),
            "w2": _w((lambda *s: torch.randn(*s, dtype=torch.bfloat16) * 0.1)(Dff, D)),
        }
    _B_in = _B_setup()

    return {
        "A_x": _A_in["x"],
        "A_wqkv": _A_in["wqkv"],
        "A_wo": _A_in["wo"],
        "B_x": _B_in["x"],
        "B_w1": _B_in["w1"],
        "B_w2": _B_in["w2"],
        "gate_w": _w((lambda *s: torch.randn(*s, dtype=torch.bfloat16) * 0.05)(640) * 16.0),
    }

def reference(A_x, A_wqkv, A_wo, B_x, B_w1, B_w2, gate_w):
    def _A_ref(x, wqkv, wo):
        B, S, D = x.shape
        H = 32; Dh = D // H
        W, dil = 8, 2
        qkv = (lambda x, *d: x.permute(*d))((x @ wqkv).reshape(B, S, 3, H, Dh), 2, 0, 3, 1, 4)
        q, k, v = qkv[0], qkv[1], qkv[2]
        scale = Dh ** -0.5
        pos = torch.arange(S)
        off = torch.arange(W) * dil
        idx = pos[:, None] - off[None, :]
        mask = idx >= 0
        idx_c = torch.where(mask, idx, 0).reshape(-1)
        kg = k[:, :, idx_c, :].reshape(B, H, S, W, Dh)
        vg = v[:, :, idx_c, :].reshape(B, H, S, W, Dh)
        logits = torch.einsum("bhsd,bhswd->bhsw", q, kg) * scale
        logits = torch.where(mask[None, None, :, :], logits, -1e9)
        attn = _softmax(logits, axis=-1)
        o = torch.einsum("bhsw,bhswd->bhsd", attn, vg)
        return (lambda x, *d: x.permute(*d))(o, 0, 2, 1, 3).reshape(B, S, D) @ wo

    def _B_ref(x, w1, w2):
        h = torch.einsum("bsd,df->bsf", x, w1)
        zero = torch.zeros_like(h)
        h = torch.maximum(h, zero)
        return torch.einsum("bsf,fd->bsd", h, w2)

    x = A_x
    g = _sigmoid((x * gate_w).sum(-1, keepdims=True))
    a = _A_ref(x, A_wqkv, A_wo)
    b = _B_ref(x, B_w1, B_w2)
    return g * a + (1 - g) * b
```

```python
import re

REG_RE = re.compile(r"^(-|abs\()?([vas])(\d+)\)?$")
RNG_RE = re.compile(r"^(-)?([vas])\[(\d+):(\d+)\]$")
TRANS = ("v_exp_f32", "v_log_f32", "v_rcp_f32", "v_rsq_f32", "v_sqrt_f32", "v_sin_f32", "v_cos_f32")

def regs_of(tok):
    tok = tok.strip()
    m = REG_RE.match(tok)
    if m: return {(m.group(2), int(m.group(3)))}
    m = RNG_RE.match(tok)
    if m: return {(m.group(2), i) for i in range(int(m.group(3)), int(m.group(4)) + 1)}
    if tok in ("vcc", "vcc_lo", "vcc_hi"): return {("s", "vcc")}
    if tok in ("exec", "exec_lo", "exec_hi"): return {("s", "exec")}
    if tok == "m0": return {("s", "m0")}
    return set()

def split_ops(s):
    out, depth, cur = [], 0, ""
    for ch in s:
        if ch in "[(": depth += 1
        if ch in "])": depth -= 1
        if ch == "," and depth == 0: out.append(cur.strip()); cur = ""
        else: cur += ch
    if cur.strip(): out.append(cur.strip())
    return out

class Ins:
    def __init__(self, text):
        self.text = text
        t = text.split(";")[0].strip()
        self.label = t.endswith(":")
        self.directive = t.startswith(".")
        self.empty = (t == "")
        self.op = ""; self.w = set(); self.r = set(); self.kind = "none"; self.states = 0
        self.srcc = set(); self.srcab = set(); self.sdata = set(); self.dpp = False
        if self.label or self.directive or self.empty: return
        p = t.split(None, 1)
        self.op = op = p[0]
        ops = split_ops(p[1]) if len(p) > 1 else []
        mods = ""
        if ops:
            q = ops[-1].split()
            ops[-1] = q[0]; mods = " ".join(q[1:])
        self.ops = ops; self.mods = mods
        self.states = 1
        R = [regs_of(o) for o in ops]
        U = lambda xs: set().union(*xs) if xs else set()
        if op == "s_nop": self.states = int(ops[0], 0) + 1; self.kind = "nop"
        elif op.startswith("v_mfma"):
            self.kind = "mfma"; self.w = R[0]; self.srcab = R[1] | R[2]; self.srcc = R[3]; self.r = self.srcab | self.srcc
            self.passes = 8 if "32x32" in op else 4
        elif op.startswith("v_"):
            self.kind = "valu"
            self.dpp = "_dpp" in op or "row_" in mods or "quad_perm" in mods or "wave_" in mods
            if op.startswith("v_permlane") and "swap" in op: self.w = R[0] | R[1]; self.r = R[0] | R[1]
            elif op.startswith("v_cmpx"): self.w = R[0] | {("s", "exec")}; self.r = U(R[1:])
            elif op.startswith("v_cmp"): self.w = R[0]; self.r = U(R[1:])
            elif "_co_" in op: self.w = R[0] | R[1]; self.r = U(R[2:])
            elif op.startswith(("v_fmac", "v_dot2c", "v_pk_fmac")) : self.w = R[0]; self.r = U(R)
            else:
                self.w = R[0]; self.r = U(R[1:])
                if self.dpp or op.startswith("v_writelane"): self.r |= R[0]
            self.trans = op.startswith(TRANS)
        elif op.startswith("ds_"):
            self.kind = "ds"
            if op.startswith(("ds_read", "ds_bpermute", "ds_permute", "ds_swizzle")): self.w = R[0]; self.r = U(R[1:])
            else: self.r = U(R)
        elif op.startswith(("buffer_", "global_")):
            self.kind = "vmem"
            islds = "lds" in mods.split() or "_lds_" in op
            self.islds = islds
            if op in ("buffer_wbl2", "buffer_inv"): pass
            elif "load" in op and not islds: self.w = R[0]; self.r = U(R[1:])
            elif "atomic" in op:
                self.r = U(R)
                if "sc0" in mods.split(): self.w = R[0]
            else:
                self.r = U(R)
                if "store" in op:
                    d = R[0] if op.startswith("buffer_") else R[1]
                    if len(d) >= 3: self.sdata = d
            if islds: self.r |= {("s", "m0")}
        elif op.startswith("s_"):
            self.kind = "salu"
            if op.startswith(("s_cmp", "s_cbranch", "s_branch", "s_waitcnt", "s_barrier", "s_endpgm", "s_setprio", "s_sleep", "s_bitcmp")): self.r = U(R)
            else:
                self.w = R[0] if R else set(); self.r = U(R[1:])
                if "saveexec" in op: self.w = self.w | {("s", "exec")}
        else:
            raise ValueError("unknown instr: " + text)

def need(p, c):
    n = 0
    vw = {x for x in p.w if x[0] in "va"}
    sw = {x for x in p.w if x[0] == "s"}
    if p.kind == "valu":
        if c.kind == "mfma" and vw & c.r: n = max(n, 2)
        if c.kind == "mfma" and ("s", "exec") in sw: n = max(n, 4)
        if c.kind == "valu":
            if c.op.startswith("v_permlane") and vw & c.r: n = max(n, 2)
            if c.dpp and vw & c.r: n = max(n, 2)
            if c.op.startswith(("v_readlane", "v_readfirstlane")) and vw & c.r: n = max(n, 1)
            if p.trans and vw & c.r: n = max(n, 1)
            if sw & c.r: n = max(n, 4 if c.op.startswith(("v_readlane", "v_writelane")) else 2)
            if ("s", "exec") in sw and (c.dpp): n = max(n, 5)
            if ("s", "exec") in sw and c.op.startswith(("v_readlane", "v_readfirstlane", "v_writelane", "v_permlane")): n = max(n, 4)
            if p.op.startswith("v_dot") and (vw & (c.r | c.w)) and not (c.op == p.op and not (vw & (c.r - c.w))): n = max(n, 3)
            if "op_sel" in getattr(p, "mods", "") and not p.op.startswith("v_pk") and vw & (c.r | c.w): n = max(n, 1)
        if c.kind == "vmem" and sw & c.r: n = max(n, 5)
        if c.kind == "salu" and sw & c.r: n = max(n, 1)
    if p.kind == "mfma":
        P = p.passes
        if c.kind == "mfma":
            if p.w & c.srcab: n = max(n, {4: 8, 8: 12}[P])
            if p.w & c.srcc and not (p.w == c.srcc and c.passes == P): n = max(n, {4: 6, 8: 10}[P])
            if p.w & c.w and not (p.w == c.srcc): n = max(n, {4: 8, 8: 12}[P])
        elif c.kind in ("valu", "ds", "vmem"):
            if p.w & (c.r | c.w): n = max(n, {4: 8, 8: 12}[P])
            if c.kind == "valu" and p.srcc & c.w: n = max(n, {4: 3, 8: 7}[P])
    if p.kind == "vmem" and p.sdata and p.sdata & c.w: n = max(n, 2)
    if p.kind == "salu" and ("s", "m0") in sw and c.kind == "vmem" and getattr(c, "islds", False): n = max(n, 1)
    if p.kind == "salu" and ("s", "exec") in sw and c.kind == "valu" and c.dpp: n = max(n, 1)
    return n

MAXD = 14
def fix_hazards(lines):
    ins = [Ins(l) for l in lines]
    out = []
    def deficit(hist, c):
        d = 0; worst = 0
        for p in reversed(hist):
            if p.states == 0: continue
            k = need(p, c) - d
            if k > worst: worst = k
            d += p.states
            if d >= MAXD: break
        return worst
    for c in ins:
        if c.states:
            k = deficit(out, c)
            if k > 0: out.append(Ins(f"s_nop {k-1}"))
        out.append(c)
    labels = {x.text.split(";")[0].strip()[:-1]: i for i, x in enumerate(out) if x.label}
    fixes = []
    for i, x in enumerate(out):
        if x.op.startswith(("s_cbranch", "s_branch")):
            tgt = labels[x.ops[0]]
            hist = list(out[max(0, i - 40): i + 1]); worst = 0; d = 0
            for c in out[tgt: tgt + 40]:
                if c.states:
                    dd = d;
                    for p in reversed(out[max(0, i - 40): i + 1]):
                        if p.states == 0: continue
                        k = need(p, c) - dd
                        worst = max(worst, k)
                        dd += p.states
                        if dd >= MAXD: break
                    d += c.states
                    if d >= MAXD: break
            if worst > 0: fixes.append((i, worst))
    for i, k in reversed(fixes):
        out.insert(i, Ins(f"s_nop {k-1}"))
    return [x.text for x in out]

class Asm:
    def __init__(self): self.L = []
    def __call__(self, s):
        for l in s.split("\n"):
            l = l.strip()
            if l: self.L.append(l)
    def text(self, fix=True):
        L = fix_hazards(self.L) if fix else self.L
        return "\n".join((l if (l.endswith(":") or l.startswith(".") or l.startswith(";")) else "  " + l) for l in L) + "\n"

def interleave(main, fill, start=0, per=2, pos=None):
    out = []
    if pos is None:
        pos = [start + i // per for i in range(len(fill))]
    byp = {}
    for f, p in zip(fill, pos): byp.setdefault(min(p, len(main) - 1), []).append(f)
    for i, m in enumerate(main):
        out.append(m)
        out.extend(byp.get(i, []))
    return out

def vr(b, n=1, k="v"):
    return f"{k}{b}" if n == 1 else f"{k}[{b}:{b+n-1}]"
def ar(b, n=1): return vr(b, n, "a")
def sr(b, n=1): return vr(b, n, "s")
```

```python
import sys, struct
sys.path.insert(0, "work")
from asmlib import *

NAME = "gated_mix__sliding_local_dilated__dense_activation_relu__prompt"
TSTR = 74 * 1024
ACT_BYTES = 128 * TSTR
GOFF = 0xA00000
SLOT = 49152
def f32(x): return "0x%08x" % struct.unpack("<I", struct.pack("<f", x))[0]

def kd(name, vgpr, accum, sgpr=96):
    return f""".section .rodata,"a"
.p2align 6
.amdhsa_kernel {name}
  .amdhsa_next_free_vgpr {vgpr}
  .amdhsa_next_free_sgpr {sgpr}
  .amdhsa_accum_offset {accum}
  .amdhsa_group_segment_fixed_size 0
  .amdhsa_kernarg_size 80
  .amdhsa_user_sgpr_count 2
  .amdhsa_user_sgpr_kernarg_segment_ptr 1
  .amdhsa_system_sgpr_workgroup_id_x 1
.end_amdhsa_kernel
.text
"""

def code_prefetch(a, endlabel, vtmp, stmp):
    a(f"s_getpc_b64 {sr(stmp,2)}\nLpc{endlabel}:")
    nbytes = f"{endlabel}-Lpc{endlabel}"
    a(f"v_lshlrev_b32 {vr(vtmp)}, 7, v0")
    a(f"v_min_u32 {vr(vtmp)}, {nbytes}, {vr(vtmp)}")
    a(f"global_load_dword {vr(vtmp+1)}, {vr(vtmp)}, {sr(stmp,2)}")

def stamp(a, idx, opt):
    if opt.get("stamps"):
        a(f"s_memtime s[{80+2*idx}:{81+2*idx}]")

def stamp_out(a, n, opt, slot, wave_s):
    if not opt.get("stamps"): return
    a("s_memrealtime s[94:95]\ns_waitcnt lgkmcnt(0)")
    a("s_load_dwordx2 s[76:77], s[0:1], 72\ns_waitcnt lgkmcnt(0)")
    a(f"s_add_u32 s76, s76, {0xC00000 + slot*0x10000}\ns_addc_u32 s77, s77, 0\ns_mov_b32 s78, 0x10000\ns_mov_b32 s79, 0x20000")
    a(f"s_lshl_b32 s75, s2, 2\ns_add_u32 s75, s75, {wave_s}\ns_lshl_b32 s75, s75, 6")
    a("s_mov_b64 exec, 1\nv_mov_b32 v1, 0")
    for i in range(8):
        a(f"v_mov_b32 v2, s{80+2*i}\nbuffer_store_dword v2, v1, s[76:79], s75 offen offset:{4*i}")
    a("v_mov_b32 v2, s93\nbuffer_store_dword v2, v1, s[76:79], s75 offen offset:32")

ACC = 128
def acc(t, F): return ACC + (t * 8 + F) * 4
def XF(b, t): return b * 48 + t * 4
def WF(b, F): return b * 48 + 16 + F * 4
VXA = 4
VWA = 6
VDX = 14
VDW = 18
VL, VR_, VC = 26, 27, 28
T0 = 30

def k1_loop(a, att, opt):
    tag = "A" if att else "F"
    def mf(b):
        out = []
        for t in range(4):
            for F in range(8):
                A, B = (ar(WF(b, F), 4), ar(XF(b, t), 4))
                if att and F >= 5: A, B = B, A
                out.append(f"v_mfma_f32_16x16x32_bf16 {vr(acc(t,F),4)}, {A}, {B}, {vr(acc(t,F),4)}")
        return out
    def reads(b, u):
        out = []
        xs = [f"ds_read_b128 {ar(XF(b,t),4)}, {vr(VXA+u)} offset:{2048*t}" for t in range(4)]
        ws = []
        for F in range(8):
            ws.append(f"ds_read_b64_tr_b16 {ar(WF(b,F),2)}, {vr(VWA+F)} offset:{16384*u}")
            ws.append(f"ds_read_b64_tr_b16 {ar(WF(b,F)+2,2)}, {vr(VWA+F)} offset:{16384*u+2048}")
        return xs[:1] + ws + xs[1:]
    def dx(j): return f"buffer_load_dwordx4 {vr(VDX+j)}, s[4:7], s24 offen offset:{1024*j} lds"
    def dw(j): return f"buffer_load_dwordx4 {vr(VDW+j)}, s[8:11], s25 offen offset:{1024*(j&3)} lds"
    adv = ["s_add_u32 s26, s26, 1\ns_cmp_eq_u32 s26, 10", "s_cselect_b32 s26, 0, s26\ns_lshl_b32 s24, s26, 7",
           "s_mul_i32 s25, s26, s31\ns_add_u32 s27, s27, %d" % SLOT, "s_cmp_eq_u32 s27, s32\ns_cselect_b32 s27, s33, s27",
           "s_add_u32 s30, s30, 1\ns_cmp_ge_u32 s30, 10", "s_cselect_b32 s6, 0, s6\ns_cselect_b32 s10, 0, s10"]
    H0 = ["s_mov_b32 m0, s27", dx(0), dx(1), dx(2), dx(3), "s_add_u32 m0, s27, s34", dw(0), dw(1)]
    H1 = [dw(2), dw(3), "s_add_u32 m0, m0, 4096", dw(4), dw(5), dw(6), dw(7)]
    for st in range(3):
        for x in H0: a(x)
        if st < 2:
            for x in H1: a(x)
            for x in adv: a(x)
    for i in range(128): a(f"v_mov_b32 v{ACC+i}, 0")
    stamp(a, 1, opt)
    a("s_waitcnt vmcnt(18)\ns_barrier")
    for x in reads(0, 0): a(x)
    a("s_mov_b32 s28, 10\ns_mov_b32 s29, %d\ns_mov_b32 s35, 0\ns_mov_b32 s69, s29\ns_mov_b32 s68, %d" % (SLOT, (-2 * SLOT) & 0xffffffff))
    stamp(a, 2, opt)
    a("s_waitcnt lgkmcnt(0)")
    a(f"Lk1loop{tag}:")
    rd = reads(1, 1)
    upd = [f"v_add_u32 {vr(VXA+i)}, s29, {vr(VXA+i)}" for i in range(10)]
    fill = rd + upd + H1 + adv
    pos = list(range(20)) + [20 + i // 1 for i in range(10)] + opt.get("posH1", [2, 7, 10, 12, 17, 22, 26]) + [27, 28, 28, 29, 30, 30]
    for x in interleave(mf(0), fill, pos=pos): a(x)
    a("s_waitcnt vmcnt(12) lgkmcnt(0)\ns_barrier")
    rd = reads(0, 0)
    nxt = ["s_add_u32 s35, s35, 1\ns_cmp_eq_u32 s35, 2", "s_cselect_b32 s29, s68, s69", "s_cmp_eq_u32 s35, 3\ns_cselect_b32 s35, 0, s35", "s_sub_u32 s28, s28, 1\ns_cmp_lg_u32 s28, 0"]
    fill = rd + H0 + nxt
    pos = list(range(20)) + opt.get("posH0", [0, 2, 7, 12, 17, 20, 22, 26]) + [27, 28, 29, 30]
    for x in interleave(mf(1), fill, pos=pos): a(x)
    a("s_waitcnt lgkmcnt(0)")
    a(f"s_cbranch_scc1 Lk1loop{tag}")

def gen_k1(a, opt):
    K = "k1_kernel"
    a(f".globl {K}\n.p2align 8\n.type {K},@function\n{K}:")
    stamp(a, 0, opt)
    if opt.get("stamps"): a("s_memrealtime s[92:93]\ns_waitcnt lgkmcnt(0)\ns_mov_b32 s93, s92")
    a("s_cmp_ge_u32 s2, 256\ns_cbranch_scc1 Lk1end")
    a("s_load_dwordx4 s[36:39], s[0:1], 0\ns_load_dwordx2 s[40:41], s[0:1], 32\ns_load_dwordx2 s[42:43], s[0:1], 48\ns_load_dwordx2 s[44:45], s[0:1], 72")
    code_prefetch(a, "Lk1end", T0, 46)
    a(f"""v_and_b32 v{VL}, 63, v0
v_lshrrev_b32 v1, 6, v0
v_lshrrev_b32 v{VR_}, 4, v{VL}
v_readfirstlane_b32 s20, v1
v_and_b32 v{VC}, 15, v0
s_and_b32 s48, s2, 7
s_lshr_b32 s49, s2, 3
s_lshr_b32 s50, s48, 2
s_and_b32 s51, s48, 3
s_lshr_b32 s52, s20, 1
s_and_b32 s53, s20, 1""")
    a("""s_cmp_ge_u32 s49, 18
s_cbranch_scc1 Lk1decF
s_mov_b32 s21, 1
s_mul_i32 s22, s50, 9
s_lshr_b32 s54, s49, 1
s_add_u32 s22, s22, s54
s_lshl_b32 s23, s51, 1
s_and_b32 s54, s49, 1
s_add_u32 s23, s23, s54
s_mul_i32 s55, s22, 114
s_sub_u32 s55, s55, 14
s_mov_b32 s31, %d
s_mul_i32 s54, s54, 5
s_add_u32 s26, s22, s54
s_branch Lk1dec2
Lk1decF:
s_mov_b32 s21, 0
s_mul_i32 s54, s51, 14
s_add_u32 s54, s54, s49
s_sub_u32 s54, s54, 18
s_lshr_b32 s23, s54, 3
s_and_b32 s54, s54, 7
s_lshl_b32 s22, s50, 3
s_add_u32 s22, s22, s54
s_lshl_b32 s55, s22, 7
s_mov_b32 s31, %d
s_mul_i32 s54, s23, 3
s_add_u32 s26, s22, s54
s_add_u32 s26, s26, 2
Lk1dec2:""" % (64 * 3840, 64 * 3456))
    if opt.get("rot", 1):
        a("s_mul_i32 s54, s26, 0x199a\ns_lshr_b32 s54, s54, 16\ns_mul_i32 s54, s54, 10\ns_sub_u32 s26, s26, s54")
    else:
        a("s_mov_b32 s26, 0")
    a("s_lshl_b32 s24, s26, 7\ns_mul_i32 s25, s26, s31\ns_mov_b32 s30, 0")
    a(f"s_lshl_b32 s33, s20, 12\ns_mov_b32 s27, s33\ns_add_u32 s32, s33, {3*SLOT}\ns_lshl_b32 s34, s20, 12\ns_add_u32 s34, s34, 16384")
    t = T0 + 2
    a(f"v_lshrrev_b32 v{t}, 3, v{VL}\nv_and_b32 v{t+1}, 7, v{VL}\ns_lshl_b32 s54, s20, 5")
    for j in range(4):
        a(f"""v_add_u32 v{t+2}, s54, v{t}
v_add_u32 v{t+2}, {8*j}, v{t+2}
v_bfe_u32 v{t+3}, v{t+2}, 1, 3
v_xor_b32 v{t+3}, v{t+3}, v{t+1}
v_and_b32 v{t+4}, 63, v{t+2}
v_lshrrev_b32 v{t+2}, 6, v{t+2}
v_lshl_add_u32 v{t+2}, v{t+4}, 1, v{t+2}
v_add_u32 v{t+2}, s55, v{t+2}
v_max_i32 v{t+2}, 0, v{t+2}
v_min_i32 v{t+2}, 2047, v{t+2}
v_mul_u32_u24 v{t+2}, 1280, v{t+2}
v_lshl_add_u32 v{t+2}, v{t+3}, 4, v{t+2}
v_add_u32 v{VDX+j}, {4096-1024*j}, v{t+2}""")
    a(f"""s_lshl_b32 s54, s52, 13
v_lshl_add_u32 v{t}, v{VC}, 7, s54
v_lshrrev_b32 v{t+1}, 1, v{VC}
v_xor_b32 v{t+1}, v{t+1}, v{VR_}
v_lshl_add_u32 v{VXA}, v{t+1}, 4, v{t}
v_xor_b32 v{VXA+1}, 64, v{VXA}""")
    a(f"""v_bfe_u32 v{t+3}, v{VL}, 2, 2
v_lshl_add_u32 v{t}, v{VR_}, 3, v{t+3}
v_lshlrev_b32 v{t}, 9, v{t}
v_add_u32 v{t}, 16384, v{t}
v_and_b32 v{t+1}, 1, v{VR_}
v_lshl_add_u32 v{t+1}, v{t+1}, 2, v{t+3}
v_lshlrev_b32 v{t+1}, 5, v{t+1}
v_and_b32 v{t+2}, 3, v{VL}""")
    a(f"v_lshrrev_b32 v{t+4}, 5, v{VL}\nv_and_b32 v{t+5}, 31, v{VL}\ns_lshl_b32 s56, s20, 4")
    a("s_waitcnt lgkmcnt(0)")
    a(f"""s_sub_u32 s4, s36, 4096
s_subb_u32 s5, s37, 0
s_mov_b32 s6, {2048*1280+4096}
s_mov_b32 s7, 0x20000
s_mov_b32 s12, s44
s_mov_b32 s13, s45
s_mov_b32 s14, {ACT_BYTES}
s_mov_b32 s15, 0x20000
s_mov_b32 s11, 0x20000
s_cmp_eq_u32 s21, 0
s_cbranch_scc1 Lk1F""")
    def wdma(att):
        for j in range(8):
            f_hi = ((2 * j) >> 3) & 1
            a(f"""v_add_u32 v{t+6}, {((2*j)&3) | (f_hi<<2)}, v{t+4}
v_lshlrev_b32 v{t+6}, 1, v{t+6}
v_xor_b32 v{t+6}, v{t+6}, v{t+5}
v_add_u32 v{t+7}, s56, v{t+4}
v_add_u32 v{t+7}, {2*j}, v{t+7}
v_mul_u32_u24 v{t+7}, {3840 if att else 3456}, v{t+7}""")
            if att:
                a(f"""v_cmp_le_u32 vcc, 11, v{t+6}
v_cndmask_b32 v{t+8}, 0, 1, vcc
v_cmp_le_u32 vcc, 21, v{t+6}
v_cndmask_b32 v{t+9}, 0, 1, vcc
v_mul_u32_u24 v{t+10}, 11, v{t+8}
v_sub_u32 v{t+6}, v{t+6}, v{t+10}
v_mul_u32_u24 v{t+10}, 10, v{t+9}
v_sub_u32 v{t+6}, v{t+6}, v{t+10}
v_min_u32 v{t+6}, 9, v{t+6}
v_add_u32 v{t+8}, v{t+8}, v{t+9}
v_mul_u32_u24 v{t+8}, 1280, v{t+8}
v_lshl_add_u32 v{t+6}, v{t+6}, 4, v{t+8}
v_add_u32 v{t+6}, s57, v{t+6}""")
            else:
                a(f"""v_lshl_add_u32 v{t+6}, v{t+6}, 4, s57
v_min_u32 v{t+6}, 3440, v{t+6}""")
            a(f"v_add_u32 v{t+6}, v{t+6}, v{t+7}\nv_add_u32 v{VDW+j}, {4096-1024*(j&3)}, v{t+6}")
    a(f"s_sub_u32 s8, s38, 4096\ns_subb_u32 s9, s39, 0\ns_mov_b32 s10, {640*3840+4096}\ns_mul_i32 s57, s23, 160")
    wdma(True)
    a(f"s_mul_i32 s54, s53, 80\nv_lshl_add_u32 v{t+6}, v{t+2}, 3, s54")
    a(f"""v_and_b32 v{t+7}, 1, v{t+2}
v_mul_u32_u24 v{t+7}, 40, v{t+7}
v_add_u32 v{t+7}, s54, v{t+7}
v_lshrrev_b32 v{t+8}, 1, v{t+2}
v_mul_u32_u24 v{t+8}, 176, v{t+8}
v_add_u32 v{t+8}, v{t+8}, v{t+7}""")
    for F, (src, off) in enumerate([(6, 0), (6, 40), (6, 176), (6, 216), (8, 32), (6, 336), (6, 376), (7, 368)]):
        a(f"v_add_u32 v{t+9}, {off}, v{t+src}\nv_xor_b32 v{t+9}, v{t+9}, v{t+1}\nv_add_u32 v{VWA+F}, v{t+9}, v{t}")
    k1_loop(a, True, opt)
    stamp(a, 3, opt)
    att_epilogue(a, opt)
    stamp(a, 4, opt)
    a("s_branch Lk1fin")
    a("Lk1F:")
    a(f"s_sub_u32 s8, s40, 4096\ns_subb_u32 s9, s41, 0\ns_mov_b32 s10, {640*3456+4096}\ns_lshl_b32 s57, s23, 9")
    wdma(False)
    a(f"s_lshl_b32 s54, s53, 8\nv_lshl_add_u32 v{t+6}, v{t+2}, 3, s54")
    for F in range(8):
        a(f"v_add_u32 v{t+9}, {32*F}, v{t+6}\nv_xor_b32 v{t+9}, v{t+9}, v{t+1}\nv_add_u32 v{VWA+F}, v{t+9}, v{t}")
    k1_loop(a, False, opt)
    stamp(a, 3, opt)
    ffn_epilogue(a, opt)
    stamp(a, 4, opt)
    a("Lk1fin:")
    a("s_waitcnt vmcnt(0)")
    stamp(a, 5, opt)
    stamp_out(a, 6, opt, 0, "s20")
    a("Lk1end:\ns_endpgm")

def ffn_epilogue(a, opt):
    st = opt.get("staux", "")
    a(f"""s_lshl_b32 s54, s22, 3
s_add_u32 s54, s54, s52
s_mul_i32 s54, s54, {TSTR}
s_lshl_b32 s56, s23, 1
s_add_u32 s56, s56, s53
s_lshl_b32 s56, s56, 12
s_add_u32 s54, s54, s56
v_lshlrev_b32 v1, 4, v{VL}
v_mov_b32 v2, v1
s_cmp_eq_u32 s56, {13*4096}
s_cbranch_scc0 Lk1Fw
v_mov_b32 v2, 0x7ffffff0
Lk1Fw:""")
    k = 0
    for tt in range(4):
        for u in range(4):
            d = T0 + 4 * (k % 4); k += 1
            for h in range(2):
                s = acc(tt, 2 * u + h)
                a(f"v_cvt_pk_bf16_f32 v{d+2*h}, v{s}, v{s+1}\nv_cvt_pk_bf16_f32 v{d+2*h+1}, v{s+2}, v{s+3}")
            for i in range(4): a(f"v_pk_max_i16 v{d+i}, v{d+i}, 0")
            a(f"buffer_store_dwordx4 {vr(d,4)}, v{1 if u < 2 else 2}, s[12:15], s54 offen offset:{1024*u} {st}")
        if tt < 3: a(f"s_add_u32 s54, s54, {2*TSTR}")
    a("s_cmp_lg_u32 s23, 6\ns_cbranch_scc1 Lk1Fg")
    a(f"""s_mov_b32 s6, {2048*1280+4096}
s_mov_b32 s16, s42
s_mov_b32 s17, s43
s_mov_b32 s18, 1280
s_mov_b32 s19, 0x20000
s_lshl_b32 s54, s53, 6
s_add_u32 s54, s54, s52
s_add_u32 s54, s54, s55
v_lshl_add_u32 v1, v{VC}, 1, s54
v_mul_u32_u24 v1, 1280, v1
v_lshlrev_b32 v3, 4, v{VR_}
v_add_u32 v1, v1, v3
v_add_u32 v1, 4096, v1
v_add_u32 v2, {32*1280}, v1""")
    for u in range(20):
        a(f"buffer_load_dwordx4 {vr(128+4*u,4)}, v3, s[16:19], 0 offen offset:{64*u}")
        a(f"buffer_load_dwordx4 {ar(8*u,4)}, v1, s[4:7], 0 offen offset:{64*u}")
        a(f"buffer_load_dwordx4 {ar(8*u+4,4)}, v2, s[4:7], 0 offen offset:{64*u}")
    a("s_waitcnt vmcnt(0)")
    for u in range(20):
        for h in range(2):
            c = "0" if u == 0 else vr(T0 + 4 * h, 4)
            a(f"v_mfma_f32_16x16x32_bf16 {vr(T0+4*h,4)}, {vr(128+4*u,4)}, {ar(8*u+4*h,4)}, {c}")
    a(f"""s_lshl_b32 s54, s22, 3
s_lshl_b32 s56, s53, 2
s_add_u32 s54, s54, s56
s_add_u32 s54, s54, s52
s_lshl_b32 s54, s54, 6
s_add_u32 s16, s44, {GOFF}
s_addc_u32 s17, s45, 0
s_mov_b32 s18, 8192
v_lshlrev_b32 v1, 2, v{VL}
v_cmp_gt_u32 vcc, 16, v{VL}
v_mov_b32 v2, 0x7ffffff0
v_cndmask_b32 v1, v2, v1, vcc""")
    for h in range(2):
        z = T0 + 4 * h
        a(f"""v_mul_f32 v{z}, {f32(-1.4426950408889634)}, v{z}
v_exp_f32 v{z}, v{z}
v_add_f32 v{z}, 1.0, v{z}
v_rcp_f32 v{z}, v{z}
buffer_store_dword v{z}, v1, s[16:19], s54 offen offset:{128*h} {st}""")
    a("Lk1Fg:")

def att_epilogue(a, opt):
    st = opt.get("staux", "")
    NEG = f32(-1.0e30)
    CS = f32(20 ** -0.5 * 1.4426950408889634)
    BC, BP, B0, MK = 4, 8, 12, 16
    t = 18
    a(f"s_mov_b32 s58, {CS}\nv_mov_b32 v{t}, {NEG}\ns_cmp_eq_u32 s22, 0\ns_cselect_b32 s54, 7, 0")
    for j in range(4):
        a(f"""v_lshl_add_u32 v{t+1}, v{VR_}, 2, {j}
v_sub_u32 v{t+2}, v{VC}, v{t+1}
v_cmp_gt_u32 vcc, 8, v{t+2}
v_cndmask_b32 v{BC+j}, v{t}, 0, vcc
v_cmp_gt_i32 vcc, -8, v{t+2}
v_cndmask_b32 v{BP+j}, v{t}, 0, vcc
v_cmp_le_u32 vcc, s54, v{t+1}
v_cndmask_b32 v{B0+j}, v{t}, v{BC+j}, vcc
v_cmp_le_i32 vcc, 0, v{t+2}
v_cndmask_b32 v{t+3+(j&1)}, 0, -1, vcc""")
        if j & 1: a(f"v_bfi_b32 v{MK+(j>>1)}, s59, v{t+3}, v{t+4}" if False else f"v_and_b32 v{t+3}, 0xffff, v{t+3}\nv_and_b32 v{t+4}, 0xffff0000, v{t+4}\nv_or_b32 v{MK+(j>>1)}, v{t+3}, v{t+4}")
    a("s_mov_b64 s[60:61], 0xffff\ns_mov_b32 s62, 0xffff0000\ns_mov_b32 s63, 0\ns_mov_b32 s64, 0xff00ff00\ns_mov_b32 s65, 0xff00ff00")
    KA, KB, QA, QB = 32, 48, 64, 80
    VA, VB, VRR = 96, 104, 112
    ZERO = 120
    a(f"v_mov_b32 v{ZERO}, 0\nv_mov_b32 v{ZERO+1}, 0\nv_mov_b32 v{ZERO+2}, 0x3f803f80")
    cvt = lambda d, s: f"v_cvt_pk_bf16_f32 v{d}, v{s}, v{s+1}\nv_cvt_pk_bf16_f32 v{d+1}, v{s+2}, v{s+3}"
    for tt in range(4):
        a(cvt(KA + 4 * tt + 2, acc(tt, 4)))
    for tt in range(4):
        a(cvt(QA + 4 * tt, acc(tt, 0))); a(cvt(QB + 4 * tt, acc(tt, 1)))
        a(f"v_mov_b32 v{QB+4*tt+2}, v{KA+4*tt+2}\nv_mov_b32 v{QB+4*tt+3}, v{KA+4*tt+3}")
        a(cvt(KA + 4 * tt, acc(tt, 2))); a(cvt(KB + 4 * tt, acc(tt, 3)))
        a(f"v_permlane32_swap_b32 v{QB+4*tt+2}, v{KA+4*tt+2}\nv_permlane32_swap_b32 v{QB+4*tt+3}, v{KA+4*tt+3}")
        a(cvt(VA + 2 * tt, acc(tt, 5))); a(cvt(VB + 2 * tt, acc(tt, 6))); a(cvt(VRR + 2 * tt, acc(tt, 7)))
        for i in (2, 3):
            a(f"""v_mov_b32 v{KB+4*tt+i}, v{KA+4*tt+i}
v_cndmask_b32 v{QA+4*tt+i}, 0, v{QB+4*tt+i}, s[60:61]
v_cndmask_b32 v{QB+4*tt+i}, 0, v{QB+4*tt+i}, s[62:63]""")
        for i in (0, 1): a(f"v_cndmask_b32 v{VRR+2*tt+i}, v{VRR+2*tt+i}, v{ZERO+2}, s[64:65]")
    mf = "v_mfma_f32_16x16x32_bf16"
    for tt in range(4):
        for h, (Kx, Qx) in enumerate(((KA, QA), (KB, QB))):
            a(f"{mf} {vr(acc(tt,2*h),4)}, {vr(Kx+4*tt,4)}, {vr(Qx+4*tt,4)}, {vr(B0 if tt == 0 else BC,4)}")
            if tt: a(f"{mf} {vr(acc(tt,2*h+1),4)}, {vr(Kx+4*(tt-1),4)}, {vr(Qx+4*tt,4)}, {vr(BP,4)}")
    OA, ORR = 20, 124
    a(f"""s_mul_i32 s54, s22, 57
s_sub_u32 s54, s54, 7
s_lshl_b32 s56, s23, 1
s_add_u32 s56, s56, s53
s_add_u32 s57, s56, 54
s_lshl_b32 s57, s57, 10
s_lshr_b32 s59, s56, 2
s_add_u32 s59, s59, 70
s_lshl_b32 s59, s59, 10
s_and_b32 s56, s56, 3
s_lshl_b32 s56, s56, 8
s_add_u32 s59, s59, s56
s_mov_b32 s56, {TSTR}
v_mov_b32 v1, 0x7ffffff0""")
    for tt in range(4):
        a(f"""v_add_u32 v2, {16*tt}, v{VC}
v_add_u32 v3, s54, v2
v_cmp_lt_u32 vcc, 6, v2
v_cmp_gt_i32 s[66:67], 1024, v3
s_and_b64 vcc, vcc, s[66:67]
v_ashrrev_i32 v2, 4, v3
v_lshl_add_u32 v2, v2, 1, s52
v_mul_lo_u32 v2, v2, s56
v_and_b32 v3, 15, v3
v_lshl_add_u32 v2, v3, 4, v2
v_lshl_add_u32 v3, v{VR_}, 8, v2
v_cndmask_b32 v{OA+tt}, v1, v3, vcc
v_lshl_add_u32 v3, v{VR_}, 3, v2
v_cndmask_b32 v3, v1, v3, vcc
v_cmp_gt_u32 vcc, 32, v{VL}
v_cndmask_b32 v{ORR+tt}, v1, v3, vcc""".replace("v_cmp_gt_i32 s[66:67], 1024, v3", "v_mov_b32 v29, 0x400\nv_cmp_gt_i32 s[66:67], v29, v3"))
    M = 64
    S = lambda tt, h: acc(tt, 2 * h)
    for tt in range(1, 4):
        for h in range(2):
            for j in range(4): a(f"v_max_f32 v{S(tt,h)+j}, v{S(tt,h)+j}, v{S(tt,h)+4+j}")
    for tt in range(4):
        for h in range(2):
            s = S(tt, h); m = M + 4 * tt + h
            a(f"v_max3_f32 v{m}, v{s}, v{s+1}, v{s+2}\nv_max_f32 v{m}, v{m}, v{s+3}")
    for tt in range(4): a(f"v_permlane32_swap_b32 v{M+4*tt}, v{M+4*tt+1}")
    for tt in range(4): a(f"v_max_f32 v{M+4*tt}, v{M+4*tt}, v{M+4*tt+1}")
    for tt in range(4): a(f"v_mov_b32 v{M+4*tt+1}, v{M+4*tt}")
    for tt in range(4): a(f"v_permlane16_swap_b32 v{M+4*tt}, v{M+4*tt+1}")
    for tt in range(4): a(f"v_max_f32 v{M+4*tt}, v{M+4*tt}, v{M+4*tt+1}")
    for tt in range(4): a(f"v_mul_f32 v{M+4*tt}, s58, v{M+4*tt}")
    for tt in range(4): a(f"v_mov_b32 v{M+4*tt+1}, v{M+4*tt}")
    for tt in range(4): a(f"v_permlane32_swap_b32 v{M+4*tt}, v{M+4*tt+1}")
    PP = lambda tt, h: acc(tt, 4 + h)
    for tt in range(4):
        for h in range(2):
            s = S(tt, h); m = M + 4 * tt + h; p = PP(tt, h)
            for j in range(4): a(f"v_fma_f32 v{s+j}, v{s+j}, s58, -v{m}")
            for j in range(4): a(f"v_exp_f32 v{s+j}, v{s+j}")
        for h in range(2):
            s = S(tt, h); p = PP(tt, h)
            if tt == 0:
                a(cvt(p, s)); a(f"v_mov_b32 v{p+2}, 0\nv_mov_b32 v{p+3}, 0")
            else:
                a(cvt(p, s))
                a(f"v_and_b32 v{p+2}, v{MK}, v{p}\nv_and_b32 v{p+3}, v{MK+1}, v{p+1}\nv_xor_b32 v{p}, v{p}, v{p+2}\nv_xor_b32 v{p+1}, v{p+1}, v{p+3}")
        vo = 2 * max(tt - 1, 0)
        a(f"{mf} {vr(acc(tt,2),4)}, {vr(VRR+vo,4)}, {vr(PP(tt,0),4)}, 0")
        a(f"{mf} {vr(acc(tt,3),4)}, {vr(VRR+vo,4)}, {vr(PP(tt,1),4)}, 0")
        a(f"{mf} {vr(acc(tt,0),4)}, {vr(VA+vo,4)}, {vr(PP(tt,0),4)}, 0")
        a(f"{mf} {vr(acc(tt,1),4)}, {vr(VB+vo,4)}, {vr(PP(tt,1),4)}, 0")
    Fm = 32
    for tt in range(4): a(f"v_mov_b32 v{Fm+4*tt+2}, v{acc(tt,2)}\nv_mov_b32 v{Fm+4*tt}, v{acc(tt,3)}")
    for tt in range(4): a(f"v_permlane32_swap_b32 v{Fm+4*tt+2}, v{Fm+4*tt}")
    for tt in range(4): a(f"v_rcp_f32 v{Fm+4*tt}, v{Fm+4*tt}")
    for tt in range(4): a(f"v_mov_b32 v{Fm+4*tt+1}, v{Fm+4*tt}")
    for tt in range(4): a(f"v_permlane32_swap_b32 v{Fm+4*tt}, v{Fm+4*tt+1}")
    for tt in range(4):
        fA, fB, fR = Fm + 4 * tt, Fm + 4 * tt + 1, Fm + 4 * tt + 3
        oA, oB, rA, rB = acc(tt, 0), acc(tt, 1), acc(tt, 2), acc(tt, 3)
        d = acc(tt, 6)
        a(f"v_cndmask_b32 v{fR}, v{fB}, v{fA}, s[60:61]")
        for j in range(4): a(f"v_mul_f32 v{oA+j}, v{fA}, v{oA+j}\nv_mul_f32 v{oB+j}, v{fB}, v{oB+j}\nv_cndmask_b32 v{rA+j}, v{rB+j}, v{rA+j}, s[60:61]")
        a(cvt(d, oA)); a(cvt(d + 2, oB))
        a(f"buffer_store_dwordx4 {vr(d,4)}, v{OA+tt}, s[12:15], s57 offen {st}")
        for j in range(4): a(f"v_mul_f32 v{rA+j}, v{fR}, v{rA+j}")
        a(cvt(d + 4, rA))
        a(f"buffer_store_dwordx2 {vr(d+4,2)}, v{ORR+tt}, s[12:15], s59 offen {st}")

def gen_k2(a, opt):
    K = "k2_kernel"
    NT = 6; NG = 22
    A2 = 128
    ac = lambda t, F: A2 + (t * 4 + F) * 4
    AF = lambda d, t: (d * NT + t) * 4
    WB = lambda b, F: 96 + (b * 4 + F) * 4
    VA_, VW, VD, VD2 = 4, 10, 14, 18
    VG = 22
    RING = 6; WLDS = RING * 4096
    a(f".globl {K}\n.p2align 8\n.type {K},@function\n{K}:")
    stamp(a, 0, opt)
    if opt.get("stamps"): a("s_memrealtime s[92:93]\ns_waitcnt lgkmcnt(0)\ns_mov_b32 s93, s92")
    a("""s_and_b32 s48, s2, 7
s_lshr_b32 s49, s2, 3
s_lshr_b32 s50, s48, 1
s_mul_i32 s50, s50, 28
s_add_u32 s50, s50, s49
s_cmp_ge_u32 s49, 28
s_cbranch_scc1 Lk2end
s_cmp_ge_u32 s50, 110
s_cbranch_scc1 Lk2end""")
    a("s_load_dwordx2 s[36:37], s[0:1], 16\ns_load_dwordx2 s[38:39], s[0:1], 40\ns_load_dwordx2 s[40:41], s[0:1], 56\ns_load_dwordx2 s[44:45], s[0:1], 72")
    code_prefetch(a, "Lk2end", T0, 46)
    a(f"""v_and_b32 v{VL}, 63, v0
v_lshrrev_b32 v1, 6, v0
v_lshrrev_b32 v{VR_}, 4, v{VL}
v_readfirstlane_b32 s20, v1
v_and_b32 v{VC}, 15, v0
s_mul_i32 s22, s50, 0x3334
s_lshr_b32 s22, s22, 16
s_mul_i32 s51, s22, 5
s_sub_u32 s23, s50, s51
s_and_b32 s51, s48, 1
s_mul_i32 s51, s51, 5
s_add_u32 s23, s23, s51""")
    t = T0 + 2
    a(f"s_mul_i32 s52, s22, {NT}\ns_mul_i32 s53, s20, {18*1024}\nv_lshlrev_b32 v{t}, 4, v{VL}")
    for tt in range(NT):
        a(f"s_add_u32 s54, s52, {tt}\ns_min_u32 s54, s54, 127\ns_mul_i32 s54, s54, {TSTR}\ns_add_u32 s54, s54, s53\nv_add_u32 v{VA_+tt}, s54, v{t}")
    a(f"""s_mul_i32 s33, s20, {WLDS}
v_lshrrev_b32 v{t}, 2, v{VL}
v_lshl_add_u32 v{t+1}, v{t}, 7, s33
v_and_b32 v{t+2}, 3, v{VL}
v_lshl_add_u32 v{t+1}, v{t+2}, 3, v{t+1}
v_bfe_u32 v{t+2}, v{t}, 1, 2""")
    for F in range(4): a(f"v_xor_b32 v{t+3}, {F}, v{t+2}\nv_lshl_add_u32 v{VW+F}, v{t+3}, 5, v{t+1}")
    a(f"""v_lshrrev_b32 v{t}, 3, v{VL}
v_and_b32 v{t+1}, 7, v{VL}
v_bfe_u32 v{t+2}, v{t}, 1, 2
v_lshlrev_b32 v{t+2}, 1, v{t+2}
v_xor_b32 v{t+1}, v{t+1}, v{t+2}
s_lshl_b32 s54, s23, 7
s_add_u32 s54, s54, 4096
v_lshl_add_u32 v{t+1}, v{t+1}, 4, s54
s_cmp_eq_u32 s20, 3
s_cselect_b32 s55, {4*1280}, 0""")
    for j in range(4):
        a(f"v_add_u32 v{t+2}, {8*j}, v{t}\nv_mul_u32_u24 v{t+2}, 1280, v{t+2}\nv_add_u32 v{t+2}, v{t+2}, v{t+1}\nv_subrev_u32 v{VD+j}, {1024*j}, v{t+2}")
        if j >= 2: a(f"v_add_u32 v{VD+j}, s55, v{VD+j}")
        a(f"""v_lshrrev_b32 v{t+2}, 2, v{t}
v_add_u32 v{t+2}, {2*(j&1)}, v{t+2}
v_mul_u32_u24 v{t+2}, 40, v{t+2}
v_and_b32 v{t+3}, 3, v{t}
v_add_u32 v{t+2}, v{t+2}, v{t+3}
v_add_u32 v{t+2}, {16+20*(j>>1)}, v{t+2}
v_mul_u32_u24 v{t+2}, 1280, v{t+2}
v_add_u32 v{t+2}, v{t+2}, v{t+1}
v_subrev_u32 v{VD2+j}, {1024*j}, v{t+2}""")
    a("s_waitcnt lgkmcnt(0)")
    a(f"""s_mov_b32 s12, s44
s_mov_b32 s13, s45
s_mov_b32 s14, {ACT_BYTES}
s_mov_b32 s15, 0x20000
s_mov_b32 s11, 0x20000
s_cmp_eq_u32 s20, 3
s_cselect_b32 s8, s36, s38
s_cselect_b32 s9, s37, s39
s_mov_b32 s10, {1728*1280+4096}
s_mov_b32 s31, {32*1280}
s_cselect_b32 s10, {640*1280+4096}, s10
s_cselect_b32 s31, {40*1280}, s31
s_cselect_b32 s21, 20, 18
s_cselect_b32 s57, 16, 99
s_mul_i32 s25, s20, {18*32*1280}
s_cselect_b32 s25, 0, s25
s_sub_u32 s8, s8, 4096
s_subb_u32 s9, s9, 0
s_mov_b32 s24, 0
s_mov_b32 s26, 0
s_mov_b32 s27, 0""")
    ldaux = opt.get("ldaux", "")
    def wd(slot):
        return [f"s_add_u32 m0, s33, {slot*4096}"] + [f"buffer_load_dwordx4 v{VD+j}, s[8:11], s25 offen offset:{1024*j} lds" for j in range(4)]
    uid = [0]
    def wadv():
        uid[0] += 1; L = f"Lk2sw{uid[0]}"
        return (f"s_add_u32 s25, s25, s31\ns_add_u32 s26, s26, 1\ns_cmp_ge_u32 s26, s21\ns_cselect_b32 s10, 0, s10\ns_cmp_lg_u32 s26, s57\ns_cbranch_scc1 {L}\n"
                + "".join(f"v_mov_b32 v{VD+j}, v{VD2+j}\n" for j in range(4)) + f"s_mov_b32 s25, 0\ns_mov_b32 s31, {160*1280}\n{L}:")
    def ad(d, tt): return f"buffer_load_dwordx4 {ar(AF(d,tt),4)}, v{VA_+tt}, s[12:15], s24 offen {ldaux}"
    aadv = "s_add_u32 s24, s24, 1024\ns_add_u32 s27, s27, 1\ns_cmp_ge_u32 s27, s21\ns_cselect_b32 s14, 0, s14"
    def rd(b, slot):
        out = []
        for F in range(4):
            out.append(f"ds_read_b64_tr_b16 {ar(WB(b,F),2)}, v{VW+F} offset:{slot*4096}")
            out.append(f"ds_read_b64_tr_b16 {ar(WB(b,F)+2,2)}, v{VW+F} offset:{slot*4096+2048}")
        return out
    def Wst(slot):
        for x in wd(slot): a(x)
        a(wadv())
    def Ast(d):
        for tt in range(NT): a(ad(d, tt))
        a(aadv)
    a(f"""s_add_u32 s16, s44, {GOFF}
s_addc_u32 s17, s45, 0
s_mov_b32 s18, 8192
s_mov_b32 s19, 0x20000
v_lshrrev_b32 v1, 3, v0
s_lshl_b32 s54, s52, 6
v_lshl_add_u32 v1, v1, 2, s54""")
    for i in range(3): a(f"buffer_load_dword v{VG+i}, v1, s[16:19], 0 offen offset:{128*i} {ldaux}")
    Wst(0); Ast(0); Wst(1); Wst(2); Ast(1); Ast(2); Wst(3); Wst(4); Wst(5)
    for i in range(NT * 16): a(f"v_mov_b32 v{A2+i}, 0")
    stamp(a, 1, opt)
    a("s_waitcnt vmcnt(38)")
    for x in rd(0, 0): a(x)
    a("s_mov_b32 s28, s21")
    stamp(a, 2, opt)
    a("Lk2loop:")
    for s in range(6):
        b = s & 1; d = s % 3
        a("s_waitcnt vmcnt(20) lgkmcnt(0)")
        main = [f"v_mfma_f32_16x16x32_bf16 {vr(ac(tt,F),4)}, {ar(WB(b,F),4)}, {ar(AF(d,tt),4)}, {vr(ac(tt,F),4)}" for tt in range(NT) for F in range(4)]
        w = wd(s)
        fill = rd(b ^ 1, (s + 1) % RING) + w + [wadv()] + [ad(d, tt) for tt in range(NT)] + [aadv]
        pos = [0, 0, 1, 1, 2, 2, 4, 4] + [4] + [5, 9, 13, 17] + [18] + [4 * tt + 3 for tt in range(NT)] + [23]
        seq = interleave(main, fill, pos=pos)
        for x in seq: a(x)
        if s in (1, 5):
            a(f"s_sub_u32 s28, s28, {2 if s == 1 else 4}\ns_cmp_eq_u32 s28, 0")
            a("s_cbranch_scc1 Lk2done" if s == 1 else "s_cbranch_scc0 Lk2loop")
    a("Lk2done:")
    stamp(a, 3, opt)
    PSZ = NT * 16 * 272
    a(f"""s_waitcnt vmcnt(0) lgkmcnt(0)
s_barrier
s_mul_i32 s54, s20, {PSZ}
v_mul_u32_u24 v1, 272, v{VC}
v_lshl_add_u32 v1, v{VR_}, 4, v1
v_add_u32 v1, s54, v1""")
    for tt in range(NT):
        for F in range(4): a(f"ds_write_b128 v1, {vr(ac(tt,F),4)} offset:{tt*16*272 + F*64}")
    a(f"""v_lshrrev_b32 v2, 3, v0
v_and_b32 v3, 7, v0
v_mul_u32_u24 v4, 272, v2
v_lshl_add_u32 v4, v3, 5, v4
v_add_u32 v5, {2*PSZ}, v4
s_mov_b32 s16, s40
s_mov_b32 s17, s41
s_mov_b32 s18, {2048*1280}
s_lshl_b32 s54, s23, 7
v_lshl_add_u32 v3, v3, 4, s54""")
    for i in range(3):
        a(f"""v_lshrrev_b32 v6, 4, v2
v_add_u32 v6, s52, v6
v_add_u32 v6, {2*i}, v6
v_and_b32 v7, 15, v2
v_lshlrev_b32 v7, 1, v7
v_and_b32 v8, 1, v6
v_add_u32 v7, v7, v8
v_lshrrev_b32 v6, 1, v6
v_lshl_add_u32 v6, v6, 5, v7
v_mul_u32_u24 v6, 1280, v6
v_add_u32 v{10+i}, v6, v3""")
    a("s_waitcnt lgkmcnt(0)\ns_barrier")
    R = 32
    for i in range(3):
        for p in range(4):
            base = "v4" if p < 2 else "v5"
            off = i * 32 * 272 + (p & 1) * PSZ
            a(f"ds_read_b128 {vr(R+i*32+p*8,4)}, {base} offset:{off}\nds_read_b128 {vr(R+i*32+p*8+4,4)}, {base} offset:{off+16}")
    for i in range(3):
        a(f"s_waitcnt lgkmcnt({min(15, 8*(2-i))})")
        r = R + i * 32
        a(f"v_sub_f32 v13, 1.0, v{VG+i}")
        for e in range(8): a(f"v_add_f32 v{r+e}, v{r+e}, v{r+8+e}")
        for e in range(8): a(f"v_add_f32 v{r+e}, v{r+e}, v{r+16+e}")
        for e in range(8): a(f"v_mul_f32 v{r+24+e}, v{VG+i}, v{r+24+e}")
        for e in range(8): a(f"v_fma_f32 v{r+e}, v{r+e}, v13, v{r+24+e}")
        for e in range(4): a(f"v_cvt_pk_bf16_f32 v{r+8+e}, v{r+2*e}, v{r+2*e+1}")
        a(f"buffer_store_dwordx4 {vr(r+8,4)}, v{10+i}, s[16:19], 0 offen")
    stamp(a, 4, opt)
    a("s_waitcnt vmcnt(0)")
    stamp(a, 5, opt)
    stamp_out(a, 6, opt, 1, "s20")
    a("Lk2end:\ns_endpgm")

HEADER = open("cdna_kernels/%s.s.ref" % NAME).read().split("; Override launch")[0]
def generate(opt):
    a = Asm()
    extra = opt.get("extra_launch", 0)
    hdr = HEADER + "; @launch kernel=k1_kernel grid=(256,1,1) block=(256,1,1) lds=%d\n" % (3 * SLOT)
    hdr += "; @launch kernel=k2_kernel grid=(224,1,1) block=(256,1,1) lds=%d\n" % max(4 * 6 * 4096, 4 * 6 * 16 * 272)
    a('.amdgcn_target "amdgcn-amd-amdhsa--gfx950"\n.text')
    gen_k1(a, opt)
    gen_k2(a, opt)
    return hdr + a.text() + kd("k1_kernel", 512, 256) + kd("k2_kernel", 512, 256)

if __name__ == "__main__":
    import json
    opt = json.loads(sys.argv[2]) if len(sys.argv) > 2 else {}
    open(sys.argv[1], "w").write(generate(opt))
```

```python
import sys, struct
sys.path.insert(0, "work")
from asmlib import *

NAME = "gated_mix__sliding_local_dilated__dense_activation_relu__prompt"
TSTR = 74 * 1024
ACT_BYTES = 128 * TSTR
GOFF = 0xA00000
SLOT = 49152
def f32(x): return "0x%08x" % struct.unpack("<I", struct.pack("<f", x))[0]

def kd(name, vgpr, accum, sgpr=96):
    return f""".section .rodata,"a"
.p2align 6
.amdhsa_kernel {name}
  .amdhsa_next_free_vgpr {vgpr}
  .amdhsa_next_free_sgpr {sgpr}
  .amdhsa_accum_offset {accum}
  .amdhsa_group_segment_fixed_size 0
  .amdhsa_kernarg_size 80
  .amdhsa_user_sgpr_count 2
  .amdhsa_user_sgpr_kernarg_segment_ptr 1
  .amdhsa_system_sgpr_workgroup_id_x 1
.end_amdhsa_kernel
.text
"""

def code_prefetch(a, endlabel, vtmp, stmp):
    a(f"s_getpc_b64 {sr(stmp,2)}\nLpc{endlabel}:")
    nbytes = f"{endlabel}-Lpc{endlabel}"
    a(f"v_lshlrev_b32 {vr(vtmp)}, 7, v0")
    a(f"v_min_u32 {vr(vtmp)}, {nbytes}, {vr(vtmp)}")
    a(f"global_load_dword {vr(vtmp+1)}, {vr(vtmp)}, {sr(stmp,2)}")

def stamp(a, idx, opt):
    if opt.get("stamps"):
        a(f"s_memtime s[{80+2*idx}:{81+2*idx}]")

def stamp_out(a, n, opt, slot, wave_s):
    if not opt.get("stamps"): return
    a("s_memrealtime s[94:95]\ns_waitcnt lgkmcnt(0)")
    a("s_load_dwordx2 s[76:77], s[0:1], 72\ns_waitcnt lgkmcnt(0)")
    a(f"s_add_u32 s76, s76, {0xC00000 + slot*0x10000}\ns_addc_u32 s77, s77, 0\ns_mov_b32 s78, 0x10000\ns_mov_b32 s79, 0x20000")
    a(f"s_lshl_b32 s75, s2, 2\ns_add_u32 s75, s75, {wave_s}\ns_lshl_b32 s75, s75, 6")
    a("s_mov_b64 exec, 1\nv_mov_b32 v1, 0")
    for i in range(8):
        a(f"v_mov_b32 v2, s{80+2*i}\nbuffer_store_dword v2, v1, s[76:79], s75 offen offset:{4*i}")
    a("v_mov_b32 v2, s93\nbuffer_store_dword v2, v1, s[76:79], s75 offen offset:32")

ACC = 128
def acc(t, F): return ACC + (t * 8 + F) * 4
def XF(b, t): return b * 48 + t * 4
def WF(b, F): return b * 48 + 16 + F * 4
VXA = 4
VWA = 6
VDX = 14
VDW = 18
VL, VR_, VC = 26, 27, 28
T0 = 30

def k1_loop(a, att, opt):
    tag = "A" if att else "F"
    def mf(b):
        out = []
        for t in range(4):
            for F in range(8):
                A, B = (ar(WF(b, F), 4), ar(XF(b, t), 4))
                if att and F >= 5: A, B = B, A
                out.append(f"v_mfma_f32_16x16x32_bf16 {vr(acc(t,F),4)}, {A}, {B}, {vr(acc(t,F),4)}")
        return out
    def reads(b, u):
        out = []
        xs = [f"ds_read_b128 {ar(XF(b,t),4)}, {vr(VXA+u)} offset:{2048*t}" for t in range(4)]
        ws = []
        for F in range(8):
            ws.append(f"ds_read_b64_tr_b16 {ar(WF(b,F),2)}, {vr(VWA+F)} offset:{16384*u}")
            ws.append(f"ds_read_b64_tr_b16 {ar(WF(b,F)+2,2)}, {vr(VWA+F)} offset:{16384*u+2048}")
        return xs[:1] + ws + xs[1:]
    def dx(j): return f"buffer_load_dwordx4 {vr(VDX+j)}, s[4:7], s24 offen offset:{1024*j} lds"
    def dw(j): return f"buffer_load_dwordx4 {vr(VDW+j)}, s[8:11], s25 offen offset:{1024*(j&3)} lds"
    adv = ["s_add_u32 s26, s26, 1\ns_cmp_eq_u32 s26, 10", "s_cselect_b32 s26, 0, s26\ns_lshl_b32 s24, s26, 7",
           "s_mul_i32 s25, s26, s31\ns_add_u32 s27, s27, %d" % SLOT, "s_cmp_eq_u32 s27, s32\ns_cselect_b32 s27, s33, s27",
           "s_add_u32 s30, s30, 1\ns_cmp_ge_u32 s30, 10", "s_cselect_b32 s6, 0, s6\ns_cselect_b32 s10, 0, s10"]
    H0 = ["s_mov_b32 m0, s27", dx(0), dx(1), dx(2), dx(3), "s_add_u32 m0, s27, s34", dw(0), dw(1)]
    H1 = [dw(2), dw(3), "s_add_u32 m0, m0, 4096", dw(4), dw(5), dw(6), dw(7)]
    for st in range(3):
        for x in H0: a(x)
        if st < 2:
            for x in H1: a(x)
            for x in adv: a(x)
    for i in range(128): a(f"v_mov_b32 v{ACC+i}, 0")
    stamp(a, 1, opt)
    a("s_waitcnt vmcnt(18)\ns_barrier")
    for x in reads(0, 0): a(x)
    a("s_mov_b32 s28, 10\ns_mov_b32 s29, %d\ns_mov_b32 s35, 0\ns_mov_b32 s69, s29\ns_mov_b32 s68, %d" % (SLOT, (-2 * SLOT) & 0xffffffff))
    stamp(a, 2, opt)
    a("s_waitcnt lgkmcnt(0)")
    a(f"Lk1loop{tag}:")
    rd = reads(1, 1)
    upd = [f"v_add_u32 {vr(VXA+i)}, s29, {vr(VXA+i)}" for i in range(10)]
    fill = rd + upd + H1 + adv
    pos = list(range(20)) + [20 + i // 1 for i in range(10)] + opt.get("posH1", [2, 7, 10, 12, 17, 22, 26]) + [27, 28, 28, 29, 30, 30]
    for x in interleave(mf(0), fill, pos=pos): a(x)
    a("s_waitcnt vmcnt(12) lgkmcnt(0)\ns_barrier")
    rd = reads(0, 0)
    nxt = ["s_add_u32 s35, s35, 1\ns_cmp_eq_u32 s35, 2", "s_cselect_b32 s29, s68, s69", "s_cmp_eq_u32 s35, 3\ns_cselect_b32 s35, 0, s35", "s_sub_u32 s28, s28, 1\ns_cmp_lg_u32 s28, 0"]
    fill = rd + H0 + nxt
    pos = list(range(20)) + opt.get("posH0", [0, 2, 7, 12, 17, 20, 22, 26]) + [27, 28, 29, 30]
    for x in interleave(mf(1), fill, pos=pos): a(x)
    a("s_waitcnt lgkmcnt(0)")
    a(f"s_cbranch_scc1 Lk1loop{tag}")

def gen_k1(a, opt):
    K = "k1_kernel"
    a(f".globl {K}\n.p2align 8\n.type {K},@function\n{K}:")
    stamp(a, 0, opt)
    if opt.get("stamps"): a("s_memrealtime s[92:93]\ns_waitcnt lgkmcnt(0)\ns_mov_b32 s93, s92")
    a("s_cmp_ge_u32 s2, 256\ns_cbranch_scc1 Lk1end")
    a("s_load_dwordx4 s[36:39], s[0:1], 0\ns_load_dwordx2 s[40:41], s[0:1], 32\ns_load_dwordx2 s[42:43], s[0:1], 48\ns_load_dwordx2 s[44:45], s[0:1], 72")
    code_prefetch(a, "Lk1end", T0, 46)
    a(f"""v_and_b32 v{VL}, 63, v0
v_lshrrev_b32 v1, 6, v0
v_lshrrev_b32 v{VR_}, 4, v{VL}
v_readfirstlane_b32 s20, v1
v_and_b32 v{VC}, 15, v0
s_and_b32 s48, s2, 7
s_lshr_b32 s49, s2, 3
s_lshr_b32 s50, s48, 2
s_and_b32 s51, s48, 3
s_lshr_b32 s52, s20, 1
s_and_b32 s53, s20, 1""")
    a("""s_cmp_ge_u32 s49, 18
s_cbranch_scc1 Lk1decF
s_mov_b32 s21, 1
s_mul_i32 s22, s50, 9
s_lshr_b32 s54, s49, 1
s_add_u32 s22, s22, s54
s_lshl_b32 s23, s51, 1
s_and_b32 s54, s49, 1
s_add_u32 s23, s23, s54
s_mul_i32 s55, s22, 114
s_sub_u32 s55, s55, 14
s_mov_b32 s31, %d
s_mul_i32 s54, s54, 5
s_add_u32 s26, s22, s54
s_branch Lk1dec2
Lk1decF:
s_mov_b32 s21, 0
s_mul_i32 s54, s51, 14
s_add_u32 s54, s54, s49
s_sub_u32 s54, s54, 18
s_lshr_b32 s23, s54, 3
s_and_b32 s54, s54, 7
s_lshl_b32 s22, s50, 3
s_add_u32 s22, s22, s54
s_lshl_b32 s55, s22, 7
s_mov_b32 s31, %d
s_mul_i32 s54, s23, 3
s_add_u32 s26, s22, s54
s_add_u32 s26, s26, 2
Lk1dec2:""" % (64 * 3840, 64 * 3456))
    if opt.get("rot", 1):
        a("s_mul_i32 s54, s26, 0x199a\ns_lshr_b32 s54, s54, 16\ns_mul_i32 s54, s54, 10\ns_sub_u32 s26, s26, s54")
    else:
        a("s_mov_b32 s26, 0")
    a("s_lshl_b32 s24, s26, 7\ns_mul_i32 s25, s26, s31\ns_mov_b32 s30, 0")
    a(f"s_lshl_b32 s33, s20, 12\ns_mov_b32 s27, s33\ns_add_u32 s32, s33, {3*SLOT}\ns_lshl_b32 s34, s20, 12\ns_add_u32 s34, s34, 16384")
    t = T0 + 2
    a(f"v_lshrrev_b32 v{t}, 3, v{VL}\nv_and_b32 v{t+1}, 7, v{VL}\ns_lshl_b32 s54, s20, 5")
    for j in range(4):
        a(f"""v_add_u32 v{t+2}, s54, v{t}
v_add_u32 v{t+2}, {8*j}, v{t+2}
v_bfe_u32 v{t+3}, v{t+2}, 1, 3
v_xor_b32 v{t+3}, v{t+3}, v{t+1}
v_and_b32 v{t+4}, 63, v{t+2}
v_lshrrev_b32 v{t+2}, 6, v{t+2}
v_lshl_add_u32 v{t+2}, v{t+4}, 1, v{t+2}
v_add_u32 v{t+2}, s55, v{t+2}
v_max_i32 v{t+2}, 0, v{t+2}
v_min_i32 v{t+2}, 2047, v{t+2}
v_mul_u32_u24 v{t+2}, 1280, v{t+2}
v_lshl_add_u32 v{t+2}, v{t+3}, 4, v{t+2}
v_add_u32 v{VDX+j}, {4096-1024*j}, v{t+2}""")
    a(f"""s_lshl_b32 s54, s52, 13
v_lshl_add_u32 v{t}, v{VC}, 7, s54
v_lshrrev_b32 v{t+1}, 1, v{VC}
v_xor_b32 v{t+1}, v{t+1}, v{VR_}
v_lshl_add_u32 v{VXA}, v{t+1}, 4, v{t}
v_xor_b32 v{VXA+1}, 64, v{VXA}""")
    a(f"""v_bfe_u32 v{t+3}, v{VL}, 2, 2
v_lshl_add_u32 v{t}, v{VR_}, 3, v{t+3}
v_lshlrev_b32 v{t}, 9, v{t}
v_add_u32 v{t}, 16384, v{t}
v_and_b32 v{t+1}, 1, v{VR_}
v_lshl_add_u32 v{t+1}, v{t+1}, 2, v{t+3}
v_lshlrev_b32 v{t+1}, 5, v{t+1}
v_and_b32 v{t+2}, 3, v{VL}""")
    a(f"v_lshrrev_b32 v{t+4}, 5, v{VL}\nv_and_b32 v{t+5}, 31, v{VL}\ns_lshl_b32 s56, s20, 4")
    a("s_waitcnt lgkmcnt(0)")
    a(f"""s_sub_u32 s4, s36, 4096
s_subb_u32 s5, s37, 0
s_mov_b32 s6, {2048*1280+4096}
s_mov_b32 s7, 0x20000
s_mov_b32 s12, s44
s_mov_b32 s13, s45
s_mov_b32 s14, {ACT_BYTES}
s_mov_b32 s15, 0x20000
s_mov_b32 s11, 0x20000
s_cmp_eq_u32 s21, 0
s_cbranch_scc1 Lk1F""")
    def wdma(att):
        for j in range(8):
            f_hi = ((2 * j) >> 3) & 1
            a(f"""v_add_u32 v{t+6}, {((2*j)&3) | (f_hi<<2)}, v{t+4}
v_lshlrev_b32 v{t+6}, 1, v{t+6}
v_xor_b32 v{t+6}, v{t+6}, v{t+5}
v_add_u32 v{t+7}, s56, v{t+4}
v_add_u32 v{t+7}, {2*j}, v{t+7}
v_mul_u32_u24 v{t+7}, {3840 if att else 3456}, v{t+7}""")
            if att:
                a(f"""v_cmp_le_u32 vcc, 11, v{t+6}
v_cndmask_b32 v{t+8}, 0, 1, vcc
v_cmp_le_u32 vcc, 21, v{t+6}
v_cndmask_b32 v{t+9}, 0, 1, vcc
v_mul_u32_u24 v{t+10}, 11, v{t+8}
v_sub_u32 v{t+6}, v{t+6}, v{t+10}
v_mul_u32_u24 v{t+10}, 10, v{t+9}
v_sub_u32 v{t+6}, v{t+6}, v{t+10}
v_min_u32 v{t+6}, 9, v{t+6}
v_add_u32 v{t+8}, v{t+8}, v{t+9}
v_mul_u32_u24 v{t+8}, 1280, v{t+8}
v_lshl_add_u32 v{t+6}, v{t+6}, 4, v{t+8}
v_add_u32 v{t+6}, s57, v{t+6}""")
            else:
                a(f"""v_lshl_add_u32 v{t+6}, v{t+6}, 4, s57
v_min_u32 v{t+6}, 3440, v{t+6}""")
            a(f"v_add_u32 v{t+6}, v{t+6}, v{t+7}\nv_add_u32 v{VDW+j}, {4096-1024*(j&3)}, v{t+6}")
    a(f"s_sub_u32 s8, s38, 4096\ns_subb_u32 s9, s39, 0\ns_mov_b32 s10, {640*3840+4096}\ns_mul_i32 s57, s23, 160")
    wdma(True)
    a(f"s_mul_i32 s54, s53, 80\nv_lshl_add_u32 v{t+6}, v{t+2}, 3, s54")
    a(f"""v_and_b32 v{t+7}, 1, v{t+2}
v_mul_u32_u24 v{t+7}, 40, v{t+7}
v_add_u32 v{t+7}, s54, v{t+7}
v_lshrrev_b32 v{t+8}, 1, v{t+2}
v_mul_u32_u24 v{t+8}, 176, v{t+8}
v_add_u32 v{t+8}, v{t+8}, v{t+7}""")
    for F, (src, off) in enumerate([(6, 0), (6, 40), (6, 176), (6, 216), (8, 32), (6, 336), (6, 376), (7, 368)]):
        a(f"v_add_u32 v{t+9}, {off}, v{t+src}\nv_xor_b32 v{t+9}, v{t+9}, v{t+1}\nv_add_u32 v{VWA+F}, v{t+9}, v{t}")
    k1_loop(a, True, opt)
    stamp(a, 3, opt)
    att_epilogue(a, opt)
    stamp(a, 4, opt)
    a("s_branch Lk1fin")
    a("Lk1F:")
    a(f"s_sub_u32 s8, s40, 4096\ns_subb_u32 s9, s41, 0\ns_mov_b32 s10, {640*3456+4096}\ns_lshl_b32 s57, s23, 9")
    wdma(False)
    a(f"s_lshl_b32 s54, s53, 8\nv_lshl_add_u32 v{t+6}, v{t+2}, 3, s54")
    for F in range(8):
        a(f"v_add_u32 v{t+9}, {32*F}, v{t+6}\nv_xor_b32 v{t+9}, v{t+9}, v{t+1}\nv_add_u32 v{VWA+F}, v{t+9}, v{t}")
    k1_loop(a, False, opt)
    stamp(a, 3, opt)
    ffn_epilogue(a, opt)
    stamp(a, 4, opt)
    a("Lk1fin:")
    a("s_waitcnt vmcnt(0)")
    stamp(a, 5, opt)
    stamp_out(a, 6, opt, 0, "s20")
    a("Lk1end:\ns_endpgm")

def ffn_epilogue(a, opt):
    st = opt.get("staux", "")
    a(f"""s_lshl_b32 s54, s22, 3
s_add_u32 s54, s54, s52
s_mul_i32 s54, s54, {TSTR}
s_lshl_b32 s56, s23, 1
s_add_u32 s56, s56, s53
s_lshl_b32 s56, s56, 12
s_add_u32 s54, s54, s56
v_lshlrev_b32 v1, 4, v{VL}
v_mov_b32 v2, v1
s_cmp_eq_u32 s56, {13*4096}
s_cbranch_scc0 Lk1Fw
v_mov_b32 v2, 0x7ffffff0
Lk1Fw:""")
    k = 0
    for tt in range(4):
        for u in range(4):
            d = T0 + 4 * (k % 4); k += 1
            for h in range(2):
                s = acc(tt, 2 * u + h)
                a(f"v_cvt_pk_bf16_f32 v{d+2*h}, v{s}, v{s+1}\nv_cvt_pk_bf16_f32 v{d+2*h+1}, v{s+2}, v{s+3}")
            for i in range(4): a(f"v_pk_max_i16 v{d+i}, v{d+i}, 0")
            a(f"buffer_store_dwordx4 {vr(d,4)}, v{1 if u < 2 else 2}, s[12:15], s54 offen offset:{1024*u} {st}")
        if tt < 3: a(f"s_add_u32 s54, s54, {2*TSTR}")
    a("s_cmp_lg_u32 s23, 6\ns_cbranch_scc1 Lk1Fg")
    a(f"""s_mov_b32 s6, {2048*1280+4096}
s_mov_b32 s16, s42
s_mov_b32 s17, s43
s_mov_b32 s18, 1280
s_mov_b32 s19, 0x20000
s_lshl_b32 s54, s53, 6
s_add_u32 s54, s54, s52
s_add_u32 s54, s54, s55
v_lshl_add_u32 v1, v{VC}, 1, s54
v_mul_u32_u24 v1, 1280, v1
v_lshlrev_b32 v3, 4, v{VR_}
v_add_u32 v1, v1, v3
v_add_u32 v1, 4096, v1
v_add_u32 v2, {32*1280}, v1""")
    for u in range(20):
        a(f"buffer_load_dwordx4 {vr(128+4*u,4)}, v3, s[16:19], 0 offen offset:{64*u}")
        a(f"buffer_load_dwordx4 {ar(8*u,4)}, v1, s[4:7], 0 offen offset:{64*u}")
        a(f"buffer_load_dwordx4 {ar(8*u+4,4)}, v2, s[4:7], 0 offen offset:{64*u}")
    a("s_waitcnt vmcnt(0)")
    for u in range(20):
        for h in range(2):
            c = "0" if u == 0 else vr(T0 + 4 * h, 4)
            a(f"v_mfma_f32_16x16x32_bf16 {vr(T0+4*h,4)}, {vr(128+4*u,4)}, {ar(8*u+4*h,4)}, {c}")
    a(f"""s_lshl_b32 s54, s22, 3
s_lshl_b32 s56, s53, 2
s_add_u32 s54, s54, s56
s_add_u32 s54, s54, s52
s_lshl_b32 s54, s54, 6
s_add_u32 s16, s44, {GOFF}
s_addc_u32 s17, s45, 0
s_mov_b32 s18, 8192
v_lshlrev_b32 v1, 2, v{VL}
v_cmp_gt_u32 vcc, 16, v{VL}
v_mov_b32 v2, 0x7ffffff0
v_cndmask_b32 v1, v2, v1, vcc""")
    for h in range(2):
        z = T0 + 4 * h
        a(f"""v_mul_f32 v{z}, {f32(-1.4426950408889634)}, v{z}
v_exp_f32 v{z}, v{z}
v_add_f32 v{z}, 1.0, v{z}
v_rcp_f32 v{z}, v{z}
buffer_store_dword v{z}, v1, s[16:19], s54 offen offset:{128*h} {st}""")
    a("Lk1Fg:")

def att_epilogue(a, opt):
    st = opt.get("staux", "")
    NEG = f32(-1.0e30)
    CS = f32(20 ** -0.5 * 1.4426950408889634)
    BC, BP, B0, MK = 4, 8, 12, 16
    t = 18
    a(f"s_mov_b32 s58, {CS}\nv_mov_b32 v{t}, {NEG}\ns_cmp_eq_u32 s22, 0\ns_cselect_b32 s54, 7, 0")
    for j in range(4):
        a(f"""v_lshl_add_u32 v{t+1}, v{VR_}, 2, {j}
v_sub_u32 v{t+2}, v{VC}, v{t+1}
v_cmp_gt_u32 vcc, 8, v{t+2}
v_cndmask_b32 v{BC+j}, v{t}, 0, vcc
v_cmp_gt_i32 vcc, -8, v{t+2}
v_cndmask_b32 v{BP+j}, v{t}, 0, vcc
v_cmp_le_u32 vcc, s54, v{t+1}
v_cndmask_b32 v{B0+j}, v{t}, v{BC+j}, vcc
v_cmp_le_i32 vcc, 0, v{t+2}
v_cndmask_b32 v{t+3+(j&1)}, 0, -1, vcc""")
        if j & 1: a(f"v_bfi_b32 v{MK+(j>>1)}, s59, v{t+3}, v{t+4}" if False else f"v_and_b32 v{t+3}, 0xffff, v{t+3}\nv_and_b32 v{t+4}, 0xffff0000, v{t+4}\nv_or_b32 v{MK+(j>>1)}, v{t+3}, v{t+4}")
    a("s_mov_b64 s[60:61], 0xffff\ns_mov_b32 s62, 0xffff0000\ns_mov_b32 s63, 0\ns_mov_b32 s64, 0xff00ff00\ns_mov_b32 s65, 0xff00ff00")
    KA, KB, QA, QB = 32, 48, 64, 80
    VA, VB, VRR = 96, 104, 112
    ZERO = 120
    a(f"v_mov_b32 v{ZERO}, 0\nv_mov_b32 v{ZERO+1}, 0\nv_mov_b32 v{ZERO+2}, 0x3f803f80")
    cvt = lambda d, s: f"v_cvt_pk_bf16_f32 v{d}, v{s}, v{s+1}\nv_cvt_pk_bf16_f32 v{d+1}, v{s+2}, v{s+3}"
    for tt in range(4):
        a(cvt(KA + 4 * tt + 2, acc(tt, 4)))
    for tt in range(4):
        a(cvt(QA + 4 * tt, acc(tt, 0))); a(cvt(QB + 4 * tt, acc(tt, 1)))
        a(f"v_mov_b32 v{QB+4*tt+2}, v{KA+4*tt+2}\nv_mov_b32 v{QB+4*tt+3}, v{KA+4*tt+3}")
        a(cvt(KA + 4 * tt, acc(tt, 2))); a(cvt(KB + 4 * tt, acc(tt, 3)))
        a(f"v_permlane32_swap_b32 v{QB+4*tt+2}, v{KA+4*tt+2}\nv_permlane32_swap_b32 v{QB+4*tt+3}, v{KA+4*tt+3}")
        a(cvt(VA + 2 * tt, acc(tt, 5))); a(cvt(VB + 2 * tt, acc(tt, 6))); a(cvt(VRR + 2 * tt, acc(tt, 7)))
        for i in (2, 3):
            a(f"""v_mov_b32 v{KB+4*tt+i}, v{KA+4*tt+i}
v_cndmask_b32 v{QA+4*tt+i}, 0, v{QB+4*tt+i}, s[60:61]
v_cndmask_b32 v{QB+4*tt+i}, 0, v{QB+4*tt+i}, s[62:63]""")
        for i in (0, 1): a(f"v_cndmask_b32 v{VRR+2*tt+i}, v{VRR+2*tt+i}, v{ZERO+2}, s[64:65]")
    mf = "v_mfma_f32_16x16x32_bf16"
    for tt in range(4):
        for h, (Kx, Qx) in enumerate(((KA, QA), (KB, QB))):
            a(f"{mf} {vr(acc(tt,2*h),4)}, {vr(Kx+4*tt,4)}, {vr(Qx+4*tt,4)}, {vr(B0 if tt == 0 else BC,4)}")
            if tt: a(f"{mf} {vr(acc(tt,2*h+1),4)}, {vr(Kx+4*(tt-1),4)}, {vr(Qx+4*tt,4)}, {vr(BP,4)}")
    OA, ORR = 20, 124
    a(f"""s_mul_i32 s54, s22, 57
s_sub_u32 s54, s54, 7
s_lshl_b32 s56, s23, 1
s_add_u32 s56, s56, s53
s_add_u32 s57, s56, 54
s_lshl_b32 s57, s57, 10
s_lshr_b32 s59, s56, 2
s_add_u32 s59, s59, 70
s_lshl_b32 s59, s59, 10
s_and_b32 s56, s56, 3
s_lshl_b32 s56, s56, 8
s_add_u32 s59, s59, s56
s_mov_b32 s56, {TSTR}
v_mov_b32 v1, 0x7ffffff0""")
    for tt in range(4):
        a(f"""v_add_u32 v2, {16*tt}, v{VC}
v_add_u32 v3, s54, v2
v_cmp_lt_u32 vcc, 6, v2
v_cmp_gt_i32 s[66:67], 1024, v3
s_and_b64 vcc, vcc, s[66:67]
v_ashrrev_i32 v2, 4, v3
v_lshl_add_u32 v2, v2, 1, s52
v_mul_lo_u32 v2, v2, s56
v_and_b32 v3, 15, v3
v_lshl_add_u32 v2, v3, 4, v2
v_lshl_add_u32 v3, v{VR_}, 8, v2
v_cndmask_b32 v{OA+tt}, v1, v3, vcc
v_lshl_add_u32 v3, v{VR_}, 3, v2
v_cndmask_b32 v3, v1, v3, vcc
v_cmp_gt_u32 vcc, 32, v{VL}
v_cndmask_b32 v{ORR+tt}, v1, v3, vcc""".replace("v_cmp_gt_i32 s[66:67], 1024, v3", "v_mov_b32 v29, 0x400\nv_cmp_gt_i32 s[66:67], v29, v3"))
    M = 64
    S = lambda tt, h: acc(tt, 2 * h)
    for tt in range(1, 4):
        for h in range(2):
            for j in range(4): a(f"v_max_f32 v{S(tt,h)+j}, v{S(tt,h)+j}, v{S(tt,h)+4+j}")
    for tt in range(4):
        for h in range(2):
            s = S(tt, h); m = M + 4 * tt + h
            a(f"v_max3_f32 v{m}, v{s}, v{s+1}, v{s+2}\nv_max_f32 v{m}, v{m}, v{s+3}")
    for tt in range(4): a(f"v_permlane32_swap_b32 v{M+4*tt}, v{M+4*tt+1}")
    for tt in range(4): a(f"v_max_f32 v{M+4*tt}, v{M+4*tt}, v{M+4*tt+1}")
    for tt in range(4): a(f"v_mov_b32 v{M+4*tt+1}, v{M+4*tt}")
    for tt in range(4): a(f"v_permlane16_swap_b32 v{M+4*tt}, v{M+4*tt+1}")
    for tt in range(4): a(f"v_max_f32 v{M+4*tt}, v{M+4*tt}, v{M+4*tt+1}")
    for tt in range(4): a(f"v_mul_f32 v{M+4*tt}, s58, v{M+4*tt}")
    for tt in range(4): a(f"v_mov_b32 v{M+4*tt+1}, v{M+4*tt}")
    for tt in range(4): a(f"v_permlane32_swap_b32 v{M+4*tt}, v{M+4*tt+1}")
    PP = lambda tt, h: acc(tt, 4 + h)
    for tt in range(4):
        for h in range(2):
            s = S(tt, h); m = M + 4 * tt + h; p = PP(tt, h)
            for j in range(4): a(f"v_fma_f32 v{s+j}, v{s+j}, s58, -v{m}")
            for j in range(4): a(f"v_exp_f32 v{s+j}, v{s+j}")
        for h in range(2):
            s = S(tt, h); p = PP(tt, h)
            if tt == 0:
                a(cvt(p, s)); a(f"v_mov_b32 v{p+2}, 0\nv_mov_b32 v{p+3}, 0")
            else:
                a(cvt(p, s))
                a(f"v_and_b32 v{p+2}, v{MK}, v{p}\nv_and_b32 v{p+3}, v{MK+1}, v{p+1}\nv_xor_b32 v{p}, v{p}, v{p+2}\nv_xor_b32 v{p+1}, v{p+1}, v{p+3}")
        vo = 2 * max(tt - 1, 0)
        a(f"{mf} {vr(acc(tt,2),4)}, {vr(VRR+vo,4)}, {vr(PP(tt,0),4)}, 0")
        a(f"{mf} {vr(acc(tt,3),4)}, {vr(VRR+vo,4)}, {vr(PP(tt,1),4)}, 0")
        a(f"{mf} {vr(acc(tt,0),4)}, {vr(VA+vo,4)}, {vr(PP(tt,0),4)}, 0")
        a(f"{mf} {vr(acc(tt,1),4)}, {vr(VB+vo,4)}, {vr(PP(tt,1),4)}, 0")
    Fm = 32
    for tt in range(4): a(f"v_mov_b32 v{Fm+4*tt+2}, v{acc(tt,2)}\nv_mov_b32 v{Fm+4*tt}, v{acc(tt,3)}")
    for tt in range(4): a(f"v_permlane32_swap_b32 v{Fm+4*tt+2}, v{Fm+4*tt}")
    for tt in range(4): a(f"v_rcp_f32 v{Fm+4*tt}, v{Fm+4*tt}")
    for tt in range(4): a(f"v_mov_b32 v{Fm+4*tt+1}, v{Fm+4*tt}")
    for tt in range(4): a(f"v_permlane32_swap_b32 v{Fm+4*tt}, v{Fm+4*tt+1}")
    for tt in range(4):
        fA, fB, fR = Fm + 4 * tt, Fm + 4 * tt + 1, Fm + 4 * tt + 3
        oA, oB, rA, rB = acc(tt, 0), acc(tt, 1), acc(tt, 2), acc(tt, 3)
        d = acc(tt, 6)
        a(f"v_cndmask_b32 v{fR}, v{fB}, v{fA}, s[60:61]")
        for j in range(4): a(f"v_mul_f32 v{oA+j}, v{fA}, v{oA+j}\nv_mul_f32 v{oB+j}, v{fB}, v{oB+j}\nv_cndmask_b32 v{rA+j}, v{rB+j}, v{rA+j}, s[60:61]")
        a(cvt(d, oA)); a(cvt(d + 2, oB))
        a(f"buffer_store_dwordx4 {vr(d,4)}, v{OA+tt}, s[12:15], s57 offen {st}")
        for j in range(4): a(f"v_mul_f32 v{rA+j}, v{fR}, v{rA+j}")
        a(cvt(d + 4, rA))
        a(f"buffer_store_dwordx2 {vr(d+4,2)}, v{ORR+tt}, s[12:15], s59 offen {st}")

def gen_k2(a, opt):
    K = "k2_kernel"
    NT = 6; NG = 22
    A2 = 128
    ac = lambda t, F: A2 + (t * 4 + F) * 4
    AF = lambda d, t: (d * NT + t) * 4
    WB = lambda b, F: 96 + (b * 4 + F) * 4
    VA_, VW, VD, VD2 = 4, 10, 14, 18
    VG = 22
    RING = 6; WLDS = RING * 4096
    a(f".globl {K}\n.p2align 8\n.type {K},@function\n{K}:")
    stamp(a, 0, opt)
    if opt.get("stamps"): a("s_memrealtime s[92:93]\ns_waitcnt lgkmcnt(0)\ns_mov_b32 s93, s92")
    a("""s_and_b32 s48, s2, 7
s_lshr_b32 s49, s2, 3
s_lshr_b32 s50, s48, 1
s_mul_i32 s50, s50, 28
s_add_u32 s50, s50, s49
s_cmp_ge_u32 s49, 28
s_cbranch_scc1 Lk2end
s_cmp_ge_u32 s50, 110
s_cbranch_scc1 Lk2end""")
    a("s_load_dwordx2 s[36:37], s[0:1], 16\ns_load_dwordx2 s[38:39], s[0:1], 40\ns_load_dwordx2 s[40:41], s[0:1], 56\ns_load_dwordx2 s[44:45], s[0:1], 72")
    code_prefetch(a, "Lk2end", T0, 46)
    a(f"""v_and_b32 v{VL}, 63, v0
v_lshrrev_b32 v1, 6, v0
v_lshrrev_b32 v{VR_}, 4, v{VL}
v_readfirstlane_b32 s20, v1
v_and_b32 v{VC}, 15, v0
s_mul_i32 s22, s50, 0x3334
s_lshr_b32 s22, s22, 16
s_mul_i32 s51, s22, 5
s_sub_u32 s23, s50, s51
s_and_b32 s51, s48, 1
s_mul_i32 s51, s51, 5
s_add_u32 s23, s23, s51""")
    t = T0 + 2
    a(f"s_mul_i32 s52, s22, {NT}\ns_mul_i32 s53, s20, {18*1024}\nv_lshlrev_b32 v{t}, 4, v{VL}")
    for tt in range(NT):
        a(f"s_add_u32 s54, s52, {tt}\ns_min_u32 s54, s54, 127\ns_mul_i32 s54, s54, {TSTR}\ns_add_u32 s54, s54, s53\nv_add_u32 v{VA_+tt}, s54, v{t}")
    a(f"""s_mul_i32 s33, s20, {WLDS}
v_lshrrev_b32 v{t}, 2, v{VL}
v_lshl_add_u32 v{t+1}, v{t}, 7, s33
v_and_b32 v{t+2}, 3, v{VL}
v_lshl_add_u32 v{t+1}, v{t+2}, 3, v{t+1}
v_bfe_u32 v{t+2}, v{t}, 1, 2""")
    for F in range(4): a(f"v_xor_b32 v{t+3}, {F}, v{t+2}\nv_lshl_add_u32 v{VW+F}, v{t+3}, 5, v{t+1}")
    a(f"""v_lshrrev_b32 v{t}, 3, v{VL}
v_and_b32 v{t+1}, 7, v{VL}
v_bfe_u32 v{t+2}, v{t}, 1, 2
v_lshlrev_b32 v{t+2}, 1, v{t+2}
v_xor_b32 v{t+1}, v{t+1}, v{t+2}
s_lshl_b32 s54, s23, 7
s_add_u32 s54, s54, 4096
v_lshl_add_u32 v{t+1}, v{t+1}, 4, s54
s_cmp_eq_u32 s20, 3
s_cselect_b32 s55, {4*1280}, 0""")
    for j in range(4):
        a(f"v_add_u32 v{t+2}, {8*j}, v{t}\nv_mul_u32_u24 v{t+2}, 1280, v{t+2}\nv_add_u32 v{t+2}, v{t+2}, v{t+1}\nv_subrev_u32 v{VD+j}, {1024*j}, v{t+2}")
        if j >= 2: a(f"v_add_u32 v{VD+j}, s55, v{VD+j}")
        a(f"""v_lshrrev_b32 v{t+2}, 2, v{t}
v_add_u32 v{t+2}, {2*(j&1)}, v{t+2}
v_mul_u32_u24 v{t+2}, 40, v{t+2}
v_and_b32 v{t+3}, 3, v{t}
v_add_u32 v{t+2}, v{t+2}, v{t+3}
v_add_u32 v{t+2}, {16+20*(j>>1)}, v{t+2}
v_mul_u32_u24 v{t+2}, 1280, v{t+2}
v_add_u32 v{t+2}, v{t+2}, v{t+1}
v_subrev_u32 v{VD2+j}, {1024*j}, v{t+2}""")
    a("s_waitcnt lgkmcnt(0)")
    a(f"""s_mov_b32 s12, s44
s_mov_b32 s13, s45
s_mov_b32 s14, {ACT_BYTES}
s_mov_b32 s15, 0x20000
s_mov_b32 s11, 0x20000
s_cmp_eq_u32 s20, 3
s_cselect_b32 s8, s36, s38
s_cselect_b32 s9, s37, s39
s_mov_b32 s10, {1728*1280+4096}
s_mov_b32 s31, {32*1280}
s_cselect_b32 s10, {640*1280+4096}, s10
s_cselect_b32 s31, {40*1280}, s31
s_cselect_b32 s21, 20, 18
s_cselect_b32 s57, 16, 99
s_mul_i32 s25, s20, {18*32*1280}
s_cselect_b32 s25, 0, s25
s_sub_u32 s8, s8, 4096
s_subb_u32 s9, s9, 0
s_mov_b32 s24, 0
s_mov_b32 s26, 0
s_mov_b32 s27, 0""")
    ldaux = opt.get("ldaux", "")
    def wd(slot):
        return [f"s_add_u32 m0, s33, {slot*4096}"] + [f"buffer_load_dwordx4 v{VD+j}, s[8:11], s25 offen offset:{1024*j} lds" for j in range(4)]
    uid = [0]
    def wadv():
        uid[0] += 1; L = f"Lk2sw{uid[0]}"
        return (f"s_add_u32 s25, s25, s31\ns_add_u32 s26, s26, 1\ns_cmp_ge_u32 s26, s21\ns_cselect_b32 s10, 0, s10\ns_cmp_lg_u32 s26, s57\ns_cbranch_scc1 {L}\n"
                + "".join(f"v_mov_b32 v{VD+j}, v{VD2+j}\n" for j in range(4)) + f"s_mov_b32 s25, 0\ns_mov_b32 s31, {160*1280}\n{L}:")
    def ad(d, tt): return f"buffer_load_dwordx4 {ar(AF(d,tt),4)}, v{VA_+tt}, s[12:15], s24 offen {ldaux}"
    aadv = "s_add_u32 s24, s24, 1024\ns_add_u32 s27, s27, 1\ns_cmp_ge_u32 s27, s21\ns_cselect_b32 s14, 0, s14"
    def rd(b, slot):
        out = []
        for F in range(4):
            out.append(f"ds_read_b64_tr_b16 {ar(WB(b,F),2)}, v{VW+F} offset:{slot*4096}")
            out.append(f"ds_read_b64_tr_b16 {ar(WB(b,F)+2,2)}, v{VW+F} offset:{slot*4096+2048}")
        return out
    def Wst(slot):
        for x in wd(slot): a(x)
        a(wadv())
    def Ast(d):
        for tt in range(NT): a(ad(d, tt))
        a(aadv)
    a(f"""s_add_u32 s16, s44, {GOFF}
s_addc_u32 s17, s45, 0
s_mov_b32 s18, 8192
s_mov_b32 s19, 0x20000
v_lshrrev_b32 v1, 3, v0
s_lshl_b32 s54, s52, 6
v_lshl_add_u32 v1, v1, 2, s54""")
    for i in range(3): a(f"buffer_load_dword v{VG+i}, v1, s[16:19], 0 offen offset:{128*i} {ldaux}")
    Wst(0); Ast(0); Wst(1); Wst(2); Ast(1); Ast(2); Wst(3); Wst(4); Wst(5)
    for i in range(NT * 16): a(f"v_mov_b32 v{A2+i}, 0")
    stamp(a, 1, opt)
    a("s_waitcnt vmcnt(38)")
    for x in rd(0, 0): a(x)
    a("s_mov_b32 s28, s21")
    stamp(a, 2, opt)
    a("Lk2loop:")
    for s in range(6):
        b = s & 1; d = s % 3
        a("s_waitcnt vmcnt(20) lgkmcnt(0)")
        main = [f"v_mfma_f32_16x16x32_bf16 {vr(ac(tt,F),4)}, {ar(WB(b,F),4)}, {ar(AF(d,tt),4)}, {vr(ac(tt,F),4)}" for tt in range(NT) for F in range(4)]
        w = wd(s)
        fill = rd(b ^ 1, (s + 1) % RING) + w + [wadv()] + [ad(d, tt) for tt in range(NT)] + [aadv]
        pos = [0, 0, 1, 1, 2, 2, 4, 4] + [4] + [5, 9, 13, 17] + [18] + [4 * tt + 3 for tt in range(NT)] + [23]
        seq = interleave(main, fill, pos=pos)
        for x in seq: a(x)
        if s in (1, 5):
            a(f"s_sub_u32 s28, s28, {2 if s == 1 else 4}\ns_cmp_eq_u32 s28, 0")
            a("s_cbranch_scc1 Lk2done" if s == 1 else "s_cbranch_scc0 Lk2loop")
    a("Lk2done:")
    stamp(a, 3, opt)
    PSZ = NT * 16 * 272
    a(f"""s_waitcnt vmcnt(0) lgkmcnt(0)
s_barrier
s_mul_i32 s54, s20, {PSZ}
v_mul_u32_u24 v1, 272, v{VC}
v_lshl_add_u32 v1, v{VR_}, 4, v1
v_add_u32 v1, s54, v1""")
    for tt in range(NT):
        for F in range(4): a(f"ds_write_b128 v1, {vr(ac(tt,F),4)} offset:{tt*16*272 + F*64}")
    a(f"""v_lshrrev_b32 v2, 3, v0
v_and_b32 v3, 7, v0
v_mul_u32_u24 v4, 272, v2
v_lshl_add_u32 v4, v3, 5, v4
v_add_u32 v5, {2*PSZ}, v4
s_mov_b32 s16, s40
s_mov_b32 s17, s41
s_mov_b32 s18, {2048*1280}
s_lshl_b32 s54, s23, 7
v_lshl_add_u32 v3, v3, 4, s54""")
    for i in range(3):
        a(f"""v_lshrrev_b32 v6, 4, v2
v_add_u32 v6, s52, v6
v_add_u32 v6, {2*i}, v6
v_and_b32 v7, 15, v2
v_lshlrev_b32 v7, 1, v7
v_and_b32 v8, 1, v6
v_add_u32 v7, v7, v8
v_lshrrev_b32 v6, 1, v6
v_lshl_add_u32 v6, v6, 5, v7
v_mul_u32_u24 v6, 1280, v6
v_add_u32 v{10+i}, v6, v3""")
    a("s_waitcnt lgkmcnt(0)\ns_barrier")
    R = 32
    for i in range(3):
        for p in range(4):
            base = "v4" if p < 2 else "v5"
            off = i * 32 * 272 + (p & 1) * PSZ
            a(f"ds_read_b128 {vr(R+i*32+p*8,4)}, {base} offset:{off}\nds_read_b128 {vr(R+i*32+p*8+4,4)}, {base} offset:{off+16}")
    for i in range(3):
        a(f"s_waitcnt lgkmcnt({min(15, 8*(2-i))})")
        r = R + i * 32
        a(f"v_sub_f32 v13, 1.0, v{VG+i}")
        for e in range(8): a(f"v_add_f32 v{r+e}, v{r+e}, v{r+8+e}")
        for e in range(8): a(f"v_add_f32 v{r+e}, v{r+e}, v{r+16+e}")
        for e in range(8): a(f"v_mul_f32 v{r+24+e}, v{VG+i}, v{r+24+e}")
        for e in range(8): a(f"v_fma_f32 v{r+e}, v{r+e}, v13, v{r+24+e}")
        for e in range(4): a(f"v_cvt_pk_bf16_f32 v{r+8+e}, v{r+2*e}, v{r+2*e+1}")
        a(f"buffer_store_dwordx4 {vr(r+8,4)}, v{10+i}, s[16:19], 0 offen")
    stamp(a, 4, opt)
    a("s_waitcnt vmcnt(0)")
    stamp(a, 5, opt)
    stamp_out(a, 6, opt, 1, "s20")
    a("Lk2end:\ns_endpgm")

HEADER = open("cdna_kernels/%s.s.ref" % NAME).read().split("; Override launch")[0]
def generate(opt):
    a = Asm()
    L = {"1": "; @launch kernel=k1_kernel grid=(256,1,1) block=(256,1,1) lds=%d\n" % (3 * SLOT + 2560),
         "2": "; @launch kernel=k2_kernel grid=(224,1,1) block=(256,1,1) lds=%d\n" % max(4 * 6 * 4096, 4 * 6 * 16 * 272),
         "e": "; @launch kernel=e_kernel grid=(1,1,1) block=(64,1,1) lds=0\n"}
    order = opt.get("order", "12")
    hdr = HEADER + "".join(L[c] for c in order)
    a('.amdgcn_target "amdgcn-amd-amdhsa--gfx950"\n.text')
    gen_k1(a, opt)
    gen_k2(a, opt)
    tail = kd("k1_kernel", 512, 256) + kd("k2_kernel", 512, 256)
    if "e" in order:
        a(".globl e_kernel\n.p2align 8\n.type e_kernel,@function\ne_kernel:\ns_endpgm")
        tail += kd("e_kernel", 8, 8, 16)
    return hdr + a.text() + tail

if __name__ == "__main__":
    import json
    opt = json.loads(sys.argv[2]) if len(sys.argv) > 2 else {}
    open(sys.argv[1], "w").write(generate(opt))
```

```python
import sys, struct
sys.path.insert(0, "work")
from asmlib import *

NAME = "gated_mix__sliding_local_dilated__dense_activation_relu__prompt"
TSTR = 74 * 1024
ACT_BYTES = 128 * TSTR
GOFF = 0xA00000
SLOT = 49152
def f32(x): return "0x%08x" % struct.unpack("<I", struct.pack("<f", x))[0]

def kd(name, vgpr, accum, sgpr=96):
    return f""".section .rodata,"a"
.p2align 6
.amdhsa_kernel {name}
  .amdhsa_next_free_vgpr {vgpr}
  .amdhsa_next_free_sgpr {sgpr}
  .amdhsa_accum_offset {accum}
  .amdhsa_group_segment_fixed_size 0
  .amdhsa_kernarg_size 80
  .amdhsa_user_sgpr_count 2
  .amdhsa_user_sgpr_kernarg_segment_ptr 1
  .amdhsa_system_sgpr_workgroup_id_x 1
.end_amdhsa_kernel
.text
"""

def code_prefetch(a, endlabel, vtmp, stmp):
    a(f"s_getpc_b64 {sr(stmp,2)}\nLpc{endlabel}:")
    nbytes = f"{endlabel}-Lpc{endlabel}"
    a(f"v_lshlrev_b32 {vr(vtmp)}, 7, v0")
    a(f"v_min_u32 {vr(vtmp)}, {nbytes}, {vr(vtmp)}")
    a(f"global_load_dword {vr(vtmp+1)}, {vr(vtmp)}, {sr(stmp,2)}")

def stamp(a, idx, opt):
    if opt.get("stamps"):
        a(f"s_memtime s[{80+2*idx}:{81+2*idx}]")

def stamp_out(a, n, opt, slot, wave_s):
    if not opt.get("stamps"): return
    a("s_memrealtime s[94:95]\ns_waitcnt lgkmcnt(0)")
    a("s_load_dwordx2 s[76:77], s[0:1], 72\ns_waitcnt lgkmcnt(0)")
    a(f"s_add_u32 s76, s76, {0xC00000 + slot*0x10000}\ns_addc_u32 s77, s77, 0\ns_mov_b32 s78, 0x10000\ns_mov_b32 s79, 0x20000")
    a(f"s_lshl_b32 s75, s2, 2\ns_add_u32 s75, s75, {wave_s}\ns_lshl_b32 s75, s75, 6")
    a("s_mov_b64 exec, 1\nv_mov_b32 v1, 0")
    for i in range(8):
        a(f"v_mov_b32 v2, s{80+2*i}\nbuffer_store_dword v2, v1, s[76:79], s75 offen offset:{4*i}")
    a("v_mov_b32 v2, s93\nbuffer_store_dword v2, v1, s[76:79], s75 offen offset:32")

ACC = 128
def acc(t, F): return ACC + (t * 8 + F) * 4
def XF(b, t): return b * 48 + t * 4
def WF(b, F): return b * 48 + 16 + F * 4
VXA = 4
VWA = 6
VDX = 14
VDW = 18
VL, VR_, VC = 26, 27, 28
T0 = 30

def k1_loop(a, att, opt):
    tag = "A" if att else "F"
    def mf(b):
        out = []
        for t in range(4):
            for F in range(8):
                A, B = (ar(WF(b, F), 4), ar(XF(b, t), 4))
                if att and F >= 5: A, B = B, A
                out.append(f"v_mfma_f32_16x16x32_bf16 {vr(acc(t,F),4)}, {A}, {B}, {vr(acc(t,F),4)}")
        return out
    def reads(b, u):
        out = []
        xs = [f"ds_read_b128 {ar(XF(b,t),4)}, {vr(VXA+u)} offset:{2048*t}" for t in range(4)]
        ws = []
        for F in range(8):
            ws.append(f"ds_read_b64_tr_b16 {ar(WF(b,F),2)}, {vr(VWA+F)} offset:{16384*u}")
            ws.append(f"ds_read_b64_tr_b16 {ar(WF(b,F)+2,2)}, {vr(VWA+F)} offset:{16384*u+2048}")
        return xs[:1] + ws + xs[1:]
    def dx(j): return f"buffer_load_dwordx4 {vr(VDX+j)}, s[4:7], s24 offen offset:{1024*j} lds"
    def dw(j): return f"buffer_load_dwordx4 {vr(VDW+j)}, s[8:11], s25 offen offset:{1024*(j&3)} lds"
    adv = ["s_add_u32 s26, s26, 1\ns_cmp_eq_u32 s26, 10", "s_cselect_b32 s26, 0, s26\ns_lshl_b32 s24, s26, 7",
           "s_mul_i32 s25, s26, s31\ns_add_u32 s27, s27, %d" % SLOT, "s_cmp_eq_u32 s27, s32\ns_cselect_b32 s27, s33, s27",
           "s_add_u32 s30, s30, 1\ns_cmp_ge_u32 s30, 10", "s_cselect_b32 s6, 0, s6\ns_cselect_b32 s10, 0, s10"]
    H0 = ["s_mov_b32 m0, s27", dx(0), dx(1), dx(2), dx(3), "s_add_u32 m0, s27, s34", dw(0), dw(1)]
    H1 = [dw(2), dw(3), "s_add_u32 m0, m0, 4096", dw(4), dw(5), dw(6), dw(7)]
    for st in range(3):
        for x in H0: a(x)
        if st < 2:
            for x in H1: a(x)
            for x in adv: a(x)
    for i in range(128): a(f"v_mov_b32 v{ACC+i}, 0")
    stamp(a, 1, opt)
    a("s_waitcnt vmcnt(18)\ns_barrier")
    for x in reads(0, 0): a(x)
    a("s_mov_b32 s28, 10\ns_mov_b32 s29, %d\ns_mov_b32 s35, 0\ns_mov_b32 s69, s29\ns_mov_b32 s68, %d" % (SLOT, (-2 * SLOT) & 0xffffffff))
    stamp(a, 2, opt)
    a("s_waitcnt lgkmcnt(0)")
    a(f"Lk1loop{tag}:")
    rd = reads(1, 1)
    upd = [f"v_add_u32 {vr(VXA+i)}, s29, {vr(VXA+i)}" for i in range(10)]
    fill = rd + upd + H1 + adv
    pos = list(range(20)) + [20 + i // 1 for i in range(10)] + opt.get("posH1", [2, 7, 10, 12, 17, 22, 26]) + [27, 28, 28, 29, 30, 30]
    for x in interleave(mf(0), fill, pos=pos): a(x)
    a("s_waitcnt vmcnt(12) lgkmcnt(0)\ns_barrier")
    rd = reads(0, 0)
    nxt = ["s_add_u32 s35, s35, 1\ns_cmp_eq_u32 s35, 2", "s_cselect_b32 s29, s68, s69", "s_cmp_eq_u32 s35, 3\ns_cselect_b32 s35, 0, s35", "s_sub_u32 s28, s28, 1\ns_cmp_lg_u32 s28, 0"]
    fill = rd + H0 + nxt
    pos = list(range(20)) + opt.get("posH0", [0, 2, 7, 12, 17, 20, 22, 26]) + [27, 28, 29, 30]
    for x in interleave(mf(1), fill, pos=pos): a(x)
    a("s_waitcnt lgkmcnt(0)")
    a(f"s_cbranch_scc1 Lk1loop{tag}")

def gen_k1(a, opt):
    K = "k1_kernel"
    a(f".globl {K}\n.p2align 8\n.type {K},@function\n{K}:")
    stamp(a, 0, opt)
    if opt.get("stamps"): a("s_memrealtime s[92:93]\ns_waitcnt lgkmcnt(0)\ns_mov_b32 s93, s92")
    a("s_cmp_ge_u32 s2, 256\ns_cbranch_scc1 Lk1end")
    a("s_load_dwordx4 s[36:39], s[0:1], 0\ns_load_dwordx2 s[40:41], s[0:1], 32\ns_load_dwordx2 s[42:43], s[0:1], 48\ns_load_dwordx2 s[44:45], s[0:1], 72")
    code_prefetch(a, "Lk1end", T0, 46)
    a(f"""v_and_b32 v{VL}, 63, v0
v_lshrrev_b32 v1, 6, v0
v_lshrrev_b32 v{VR_}, 4, v{VL}
v_readfirstlane_b32 s20, v1
v_and_b32 v{VC}, 15, v0
s_and_b32 s48, s2, 7
s_lshr_b32 s49, s2, 3
s_lshr_b32 s50, s48, 2
s_and_b32 s51, s48, 3
s_lshr_b32 s52, s20, 1
s_and_b32 s53, s20, 1""")
    a("""s_cmp_ge_u32 s49, 18
s_cbranch_scc1 Lk1decF
s_mov_b32 s21, 1
s_mul_i32 s22, s50, 9
s_lshr_b32 s54, s49, 1
s_add_u32 s22, s22, s54
s_lshl_b32 s23, s51, 1
s_and_b32 s54, s49, 1
s_add_u32 s23, s23, s54
s_mul_i32 s55, s22, 114
s_sub_u32 s55, s55, 14
s_mov_b32 s31, %d
s_mul_i32 s54, s54, 5
s_add_u32 s26, s22, s54
s_branch Lk1dec2
Lk1decF:
s_mov_b32 s21, 0
s_mul_i32 s54, s51, 14
s_add_u32 s54, s54, s49
s_sub_u32 s54, s54, 18
s_lshr_b32 s23, s54, 3
s_and_b32 s54, s54, 7
s_lshl_b32 s22, s50, 3
s_add_u32 s22, s22, s54
s_lshl_b32 s55, s22, 7
s_mov_b32 s31, %d
s_mul_i32 s54, s23, 3
s_add_u32 s26, s22, s54
s_add_u32 s26, s26, 2
Lk1dec2:""" % (64 * 3840, 64 * 3456))
    if opt.get("rot", 1):
        a("s_mul_i32 s54, s26, 0x199a\ns_lshr_b32 s54, s54, 16\ns_mul_i32 s54, s54, 10\ns_sub_u32 s26, s26, s54")
    else:
        a("s_mov_b32 s26, 0")
    a("s_lshl_b32 s24, s26, 7\ns_mul_i32 s25, s26, s31\ns_mov_b32 s30, 0")
    a(f"s_lshl_b32 s33, s20, 12\ns_mov_b32 s27, s33\ns_add_u32 s32, s33, {3*SLOT}\ns_lshl_b32 s34, s20, 12\ns_add_u32 s34, s34, 16384")
    t = T0 + 2
    a(f"v_lshrrev_b32 v{t}, 3, v{VL}\nv_and_b32 v{t+1}, 7, v{VL}\ns_lshl_b32 s54, s20, 5")
    for j in range(4):
        a(f"""v_add_u32 v{t+2}, s54, v{t}
v_add_u32 v{t+2}, {8*j}, v{t+2}
v_bfe_u32 v{t+3}, v{t+2}, 1, 3
v_xor_b32 v{t+3}, v{t+3}, v{t+1}
v_and_b32 v{t+4}, 63, v{t+2}
v_lshrrev_b32 v{t+2}, 6, v{t+2}
v_lshl_add_u32 v{t+2}, v{t+4}, 1, v{t+2}
v_add_u32 v{t+2}, s55, v{t+2}
v_max_i32 v{t+2}, 0, v{t+2}
v_min_i32 v{t+2}, 2047, v{t+2}
v_mul_u32_u24 v{t+2}, 1280, v{t+2}
v_lshl_add_u32 v{t+2}, v{t+3}, 4, v{t+2}
v_add_u32 v{VDX+j}, {4096-1024*j}, v{t+2}""")
    a(f"""s_lshl_b32 s54, s52, 13
v_lshl_add_u32 v{t}, v{VC}, 7, s54
v_lshrrev_b32 v{t+1}, 1, v{VC}
v_xor_b32 v{t+1}, v{t+1}, v{VR_}
v_lshl_add_u32 v{VXA}, v{t+1}, 4, v{t}
v_xor_b32 v{VXA+1}, 64, v{VXA}""")
    a(f"""v_bfe_u32 v{t+3}, v{VL}, 2, 2
v_lshl_add_u32 v{t}, v{VR_}, 3, v{t+3}
v_lshlrev_b32 v{t}, 9, v{t}
v_add_u32 v{t}, 16384, v{t}
v_and_b32 v{t+1}, 1, v{VR_}
v_lshl_add_u32 v{t+1}, v{t+1}, 2, v{t+3}
v_lshlrev_b32 v{t+1}, 5, v{t+1}
v_and_b32 v{t+2}, 3, v{VL}""")
    a(f"v_lshrrev_b32 v{t+4}, 5, v{VL}\nv_and_b32 v{t+5}, 31, v{VL}\ns_lshl_b32 s56, s20, 4")
    a("s_waitcnt lgkmcnt(0)")
    a(f"""s_sub_u32 s4, s36, 4096
s_subb_u32 s5, s37, 0
s_mov_b32 s6, {2048*1280+4096}
s_mov_b32 s7, 0x20000
s_mov_b32 s12, s44
s_mov_b32 s13, s45
s_mov_b32 s14, {ACT_BYTES}
s_mov_b32 s15, 0x20000
s_mov_b32 s11, 0x20000
s_cmp_eq_u32 s21, 0
s_cbranch_scc1 Lk1F""")
    def wdma(att):
        for j in range(8):
            f_hi = ((2 * j) >> 3) & 1
            a(f"""v_add_u32 v{t+6}, {((2*j)&3) | (f_hi<<2)}, v{t+4}
v_lshlrev_b32 v{t+6}, 1, v{t+6}
v_xor_b32 v{t+6}, v{t+6}, v{t+5}
v_add_u32 v{t+7}, s56, v{t+4}
v_add_u32 v{t+7}, {2*j}, v{t+7}
v_mul_u32_u24 v{t+7}, {3840 if att else 3456}, v{t+7}""")
            if att:
                a(f"""v_cmp_le_u32 vcc, 11, v{t+6}
v_cndmask_b32 v{t+8}, 0, 1, vcc
v_cmp_le_u32 vcc, 21, v{t+6}
v_cndmask_b32 v{t+9}, 0, 1, vcc
v_mul_u32_u24 v{t+10}, 11, v{t+8}
v_sub_u32 v{t+6}, v{t+6}, v{t+10}
v_mul_u32_u24 v{t+10}, 10, v{t+9}
v_sub_u32 v{t+6}, v{t+6}, v{t+10}
v_min_u32 v{t+6}, 9, v{t+6}
v_add_u32 v{t+8}, v{t+8}, v{t+9}
v_mul_u32_u24 v{t+8}, 1280, v{t+8}
v_lshl_add_u32 v{t+6}, v{t+6}, 4, v{t+8}
v_add_u32 v{t+6}, s57, v{t+6}""")
            else:
                a(f"""v_lshl_add_u32 v{t+6}, v{t+6}, 4, s57
v_min_u32 v{t+6}, 3440, v{t+6}""")
            a(f"v_add_u32 v{t+6}, v{t+6}, v{t+7}\nv_add_u32 v{VDW+j}, {4096-1024*(j&3)}, v{t+6}")
    a(f"s_sub_u32 s8, s38, 4096\ns_subb_u32 s9, s39, 0\ns_mov_b32 s10, {640*3840+4096}\ns_mul_i32 s57, s23, 160")
    wdma(True)
    a(f"s_mul_i32 s54, s53, 80\nv_lshl_add_u32 v{t+6}, v{t+2}, 3, s54")
    a(f"""v_and_b32 v{t+7}, 1, v{t+2}
v_mul_u32_u24 v{t+7}, 40, v{t+7}
v_add_u32 v{t+7}, s54, v{t+7}
v_lshrrev_b32 v{t+8}, 1, v{t+2}
v_mul_u32_u24 v{t+8}, 176, v{t+8}
v_add_u32 v{t+8}, v{t+8}, v{t+7}""")
    for F, (src, off) in enumerate([(6, 0), (6, 40), (6, 176), (6, 216), (8, 32), (6, 336), (6, 376), (7, 368)]):
        a(f"v_add_u32 v{t+9}, {off}, v{t+src}\nv_xor_b32 v{t+9}, v{t+9}, v{t+1}\nv_add_u32 v{VWA+F}, v{t+9}, v{t}")
    k1_loop(a, True, opt)
    stamp(a, 3, opt)
    att_epilogue(a, opt)
    stamp(a, 4, opt)
    a("s_branch Lk1fin")
    a("Lk1F:")
    a(f"s_sub_u32 s8, s40, 4096\ns_subb_u32 s9, s41, 0\ns_mov_b32 s10, {640*3456+4096}\ns_lshl_b32 s57, s23, 9")
    wdma(False)
    a(f"s_lshl_b32 s54, s53, 8\nv_lshl_add_u32 v{t+6}, v{t+2}, 3, s54")
    for F in range(8):
        a(f"v_add_u32 v{t+9}, {32*F}, v{t+6}\nv_xor_b32 v{t+9}, v{t+9}, v{t+1}\nv_add_u32 v{VWA+F}, v{t+9}, v{t}")
    k1_loop(a, False, opt)
    stamp(a, 3, opt)
    ffn_epilogue(a, opt)
    stamp(a, 4, opt)
    a("Lk1fin:")
    a("s_waitcnt vmcnt(0)")
    stamp(a, 5, opt)
    stamp_out(a, 6, opt, 0, "s20")
    a("Lk1end:\ns_endpgm")

def ffn_epilogue(a, opt):
    st = opt.get("staux", "")
    a(f"""s_lshl_b32 s54, s22, 3
s_add_u32 s54, s54, s52
s_mul_i32 s54, s54, {TSTR}
s_lshl_b32 s56, s23, 1
s_add_u32 s56, s56, s53
s_lshl_b32 s56, s56, 12
s_add_u32 s54, s54, s56
v_lshlrev_b32 v1, 4, v{VL}
v_mov_b32 v2, v1
s_cmp_eq_u32 s56, {13*4096}
s_cbranch_scc0 Lk1Fw
v_mov_b32 v2, 0x7ffffff0
Lk1Fw:""")
    k = 0
    for tt in range(4):
        for u in range(4):
            d = T0 + 4 * (k % 4); k += 1
            for h in range(2):
                s = acc(tt, 2 * u + h)
                a(f"v_cvt_pk_bf16_f32 v{d+2*h}, v{s}, v{s+1}\nv_cvt_pk_bf16_f32 v{d+2*h+1}, v{s+2}, v{s+3}")
            for i in range(4): a(f"v_pk_max_i16 v{d+i}, v{d+i}, 0")
            a(f"buffer_store_dwordx4 {vr(d,4)}, v{1 if u < 2 else 2}, s[12:15], s54 offen offset:{1024*u} {st}")
        if tt < 3: a(f"s_add_u32 s54, s54, {2*TSTR}")
    a("s_cmp_lg_u32 s23, 6\ns_cbranch_scc1 Lk1Fg")
    a(f"""s_mov_b32 s6, {2048*1280+4096}
s_mov_b32 s16, s42
s_mov_b32 s17, s43
s_mov_b32 s18, 1280
s_mov_b32 s19, 0x20000
s_lshl_b32 s54, s53, 6
s_add_u32 s54, s54, s52
s_add_u32 s54, s54, s55
v_lshl_add_u32 v1, v{VC}, 1, s54
v_mul_u32_u24 v1, 1280, v1
v_lshlrev_b32 v3, 4, v{VR_}
v_add_u32 v1, v1, v3
v_add_u32 v1, 4096, v1
v_add_u32 v2, {32*1280}, v1""")
    for u in range(20):
        a(f"buffer_load_dwordx4 {vr(128+4*u,4)}, v3, s[16:19], 0 offen offset:{64*u}")
        a(f"buffer_load_dwordx4 {ar(8*u,4)}, v1, s[4:7], 0 offen offset:{64*u}")
        a(f"buffer_load_dwordx4 {ar(8*u+4,4)}, v2, s[4:7], 0 offen offset:{64*u}")
    a("s_waitcnt vmcnt(0)")
    for u in range(20):
        for h in range(2):
            c = "0" if u == 0 else vr(T0 + 4 * h, 4)
            a(f"v_mfma_f32_16x16x32_bf16 {vr(T0+4*h,4)}, {vr(128+4*u,4)}, {ar(8*u+4*h,4)}, {c}")
    a(f"""s_lshl_b32 s54, s22, 3
s_lshl_b32 s56, s53, 2
s_add_u32 s54, s54, s56
s_add_u32 s54, s54, s52
s_lshl_b32 s54, s54, 6
s_add_u32 s16, s44, {GOFF}
s_addc_u32 s17, s45, 0
s_mov_b32 s18, 8192
v_lshlrev_b32 v1, 2, v{VL}
v_cmp_gt_u32 vcc, 16, v{VL}
v_mov_b32 v2, 0x7ffffff0
v_cndmask_b32 v1, v2, v1, vcc""")
    for h in range(2):
        z = T0 + 4 * h
        a(f"""v_mul_f32 v{z}, {f32(-1.4426950408889634)}, v{z}
v_exp_f32 v{z}, v{z}
v_add_f32 v{z}, 1.0, v{z}
v_rcp_f32 v{z}, v{z}
buffer_store_dword v{z}, v1, s[16:19], s54 offen offset:{128*h} {st}""")
    a("Lk1Fg:")

def att_epilogue(a, opt):
    st = opt.get("staux", "")
    NEG = f32(-1.0e30)
    CS = f32(20 ** -0.5 * 1.4426950408889634)
    BC, BP, B0, MK = 4, 8, 12, 16
    t = 18
    a(f"s_mov_b32 s58, {CS}\nv_mov_b32 v{t}, {NEG}\ns_cmp_eq_u32 s22, 0\ns_cselect_b32 s54, 7, 0")
    for j in range(4):
        a(f"""v_lshl_add_u32 v{t+1}, v{VR_}, 2, {j}
v_sub_u32 v{t+2}, v{VC}, v{t+1}
v_cmp_gt_u32 vcc, 8, v{t+2}
v_cndmask_b32 v{BC+j}, v{t}, 0, vcc
v_cmp_gt_i32 vcc, -8, v{t+2}
v_cndmask_b32 v{BP+j}, v{t}, 0, vcc
v_cmp_le_u32 vcc, s54, v{t+1}
v_cndmask_b32 v{B0+j}, v{t}, v{BC+j}, vcc
v_cmp_le_i32 vcc, 0, v{t+2}
v_cndmask_b32 v{t+3+(j&1)}, 0, -1, vcc""")
        if j & 1: a(f"v_bfi_b32 v{MK+(j>>1)}, s59, v{t+3}, v{t+4}" if False else f"v_and_b32 v{t+3}, 0xffff, v{t+3}\nv_and_b32 v{t+4}, 0xffff0000, v{t+4}\nv_or_b32 v{MK+(j>>1)}, v{t+3}, v{t+4}")
    a("s_mov_b64 s[60:61], 0xffff\ns_mov_b32 s62, 0xffff0000\ns_mov_b32 s63, 0\ns_mov_b32 s64, 0xff00ff00\ns_mov_b32 s65, 0xff00ff00")
    KA, KB, QA, QB = 32, 48, 64, 80
    VA, VB, VRR = 96, 104, 112
    ZERO = 120
    a(f"v_mov_b32 v{ZERO}, 0\nv_mov_b32 v{ZERO+1}, 0\nv_mov_b32 v{ZERO+2}, 0x3f803f80")
    cvt = lambda d, s: f"v_cvt_pk_bf16_f32 v{d}, v{s}, v{s+1}\nv_cvt_pk_bf16_f32 v{d+1}, v{s+2}, v{s+3}"
    for tt in range(4):
        a(cvt(KA + 4 * tt + 2, acc(tt, 4)))
    for tt in range(4):
        a(cvt(QA + 4 * tt, acc(tt, 0))); a(cvt(QB + 4 * tt, acc(tt, 1)))
        a(f"v_mov_b32 v{QB+4*tt+2}, v{KA+4*tt+2}\nv_mov_b32 v{QB+4*tt+3}, v{KA+4*tt+3}")
        a(cvt(KA + 4 * tt, acc(tt, 2))); a(cvt(KB + 4 * tt, acc(tt, 3)))
        a(f"v_permlane32_swap_b32 v{QB+4*tt+2}, v{KA+4*tt+2}\nv_permlane32_swap_b32 v{QB+4*tt+3}, v{KA+4*tt+3}")
        a(cvt(VA + 2 * tt, acc(tt, 5))); a(cvt(VB + 2 * tt, acc(tt, 6))); a(cvt(VRR + 2 * tt, acc(tt, 7)))
        for i in (2, 3):
            a(f"""v_mov_b32 v{KB+4*tt+i}, v{KA+4*tt+i}
v_cndmask_b32 v{QA+4*tt+i}, 0, v{QB+4*tt+i}, s[60:61]
v_cndmask_b32 v{QB+4*tt+i}, 0, v{QB+4*tt+i}, s[62:63]""")
        for i in (0, 1): a(f"v_cndmask_b32 v{VRR+2*tt+i}, v{VRR+2*tt+i}, v{ZERO+2}, s[64:65]")
    mf = "v_mfma_f32_16x16x32_bf16"
    for tt in range(4):
        for h, (Kx, Qx) in enumerate(((KA, QA), (KB, QB))):
            a(f"{mf} {vr(acc(tt,2*h),4)}, {vr(Kx+4*tt,4)}, {vr(Qx+4*tt,4)}, {vr(B0 if tt == 0 else BC,4)}")
            if tt: a(f"{mf} {vr(acc(tt,2*h+1),4)}, {vr(Kx+4*(tt-1),4)}, {vr(Qx+4*tt,4)}, {vr(BP,4)}")
    OA, ORR = 20, 124
    a(f"""s_mul_i32 s54, s22, 57
s_sub_u32 s54, s54, 7
s_lshl_b32 s56, s23, 1
s_add_u32 s56, s56, s53
s_add_u32 s57, s56, 54
s_lshl_b32 s57, s57, 10
s_lshr_b32 s59, s56, 2
s_add_u32 s59, s59, 70
s_lshl_b32 s59, s59, 10
s_and_b32 s56, s56, 3
s_lshl_b32 s56, s56, 8
s_add_u32 s59, s59, s56
s_mov_b32 s56, {TSTR}
v_mov_b32 v1, 0x7ffffff0""")
    for tt in range(4):
        a(f"""v_add_u32 v2, {16*tt}, v{VC}
v_add_u32 v3, s54, v2
v_cmp_lt_u32 vcc, 6, v2
v_cmp_gt_i32 s[66:67], 1024, v3
s_and_b64 vcc, vcc, s[66:67]
v_ashrrev_i32 v2, 4, v3
v_lshl_add_u32 v2, v2, 1, s52
v_mul_lo_u32 v2, v2, s56
v_and_b32 v3, 15, v3
v_lshl_add_u32 v2, v3, 4, v2
v_lshl_add_u32 v3, v{VR_}, 8, v2
v_cndmask_b32 v{OA+tt}, v1, v3, vcc
v_lshl_add_u32 v3, v{VR_}, 3, v2
v_cndmask_b32 v3, v1, v3, vcc
v_cmp_gt_u32 vcc, 32, v{VL}
v_cndmask_b32 v{ORR+tt}, v1, v3, vcc""".replace("v_cmp_gt_i32 s[66:67], 1024, v3", "v_mov_b32 v29, 0x400\nv_cmp_gt_i32 s[66:67], v29, v3"))
    M = 64
    S = lambda tt, h: acc(tt, 2 * h)
    for tt in range(1, 4):
        for h in range(2):
            for j in range(4): a(f"v_max_f32 v{S(tt,h)+j}, v{S(tt,h)+j}, v{S(tt,h)+4+j}")
    for tt in range(4):
        for h in range(2):
            s = S(tt, h); m = M + 4 * tt + h
            a(f"v_max3_f32 v{m}, v{s}, v{s+1}, v{s+2}\nv_max_f32 v{m}, v{m}, v{s+3}")
    for tt in range(4): a(f"v_permlane32_swap_b32 v{M+4*tt}, v{M+4*tt+1}")
    for tt in range(4): a(f"v_max_f32 v{M+4*tt}, v{M+4*tt}, v{M+4*tt+1}")
    for tt in range(4): a(f"v_mov_b32 v{M+4*tt+1}, v{M+4*tt}")
    for tt in range(4): a(f"v_permlane16_swap_b32 v{M+4*tt}, v{M+4*tt+1}")
    for tt in range(4): a(f"v_max_f32 v{M+4*tt}, v{M+4*tt}, v{M+4*tt+1}")
    for tt in range(4): a(f"v_mul_f32 v{M+4*tt}, s58, v{M+4*tt}")
    for tt in range(4): a(f"v_mov_b32 v{M+4*tt+1}, v{M+4*tt}")
    for tt in range(4): a(f"v_permlane32_swap_b32 v{M+4*tt}, v{M+4*tt+1}")
    PP = lambda tt, h: acc(tt, 4 + h)
    for tt in range(4):
        for h in range(2):
            s = S(tt, h); m = M + 4 * tt + h; p = PP(tt, h)
            for j in range(4): a(f"v_fma_f32 v{s+j}, v{s+j}, s58, -v{m}")
            for j in range(4): a(f"v_exp_f32 v{s+j}, v{s+j}")
        for h in range(2):
            s = S(tt, h); p = PP(tt, h)
            if tt == 0:
                a(cvt(p, s)); a(f"v_mov_b32 v{p+2}, 0\nv_mov_b32 v{p+3}, 0")
            else:
                a(cvt(p, s))
                a(f"v_and_b32 v{p+2}, v{MK}, v{p}\nv_and_b32 v{p+3}, v{MK+1}, v{p+1}\nv_xor_b32 v{p}, v{p}, v{p+2}\nv_xor_b32 v{p+1}, v{p+1}, v{p+3}")
        vo = 2 * max(tt - 1, 0)
        a(f"{mf} {vr(acc(tt,2),4)}, {vr(VRR+vo,4)}, {vr(PP(tt,0),4)}, 0")
        a(f"{mf} {vr(acc(tt,3),4)}, {vr(VRR+vo,4)}, {vr(PP(tt,1),4)}, 0")
        a(f"{mf} {vr(acc(tt,0),4)}, {vr(VA+vo,4)}, {vr(PP(tt,0),4)}, 0")
        a(f"{mf} {vr(acc(tt,1),4)}, {vr(VB+vo,4)}, {vr(PP(tt,1),4)}, 0")
    Fm = 32
    for tt in range(4): a(f"v_mov_b32 v{Fm+4*tt+2}, v{acc(tt,2)}\nv_mov_b32 v{Fm+4*tt}, v{acc(tt,3)}")
    for tt in range(4): a(f"v_permlane32_swap_b32 v{Fm+4*tt+2}, v{Fm+4*tt}")
    for tt in range(4): a(f"v_rcp_f32 v{Fm+4*tt}, v{Fm+4*tt}")
    for tt in range(4): a(f"v_mov_b32 v{Fm+4*tt+1}, v{Fm+4*tt}")
    for tt in range(4): a(f"v_permlane32_swap_b32 v{Fm+4*tt}, v{Fm+4*tt+1}")
    for tt in range(4):
        fA, fB, fR = Fm + 4 * tt, Fm + 4 * tt + 1, Fm + 4 * tt + 3
        oA, oB, rA, rB = acc(tt, 0), acc(tt, 1), acc(tt, 2), acc(tt, 3)
        d = acc(tt, 6)
        a(f"v_cndmask_b32 v{fR}, v{fB}, v{fA}, s[60:61]")
        for j in range(4): a(f"v_mul_f32 v{oA+j}, v{fA}, v{oA+j}\nv_mul_f32 v{oB+j}, v{fB}, v{oB+j}\nv_cndmask_b32 v{rA+j}, v{rB+j}, v{rA+j}, s[60:61]")
        a(cvt(d, oA)); a(cvt(d + 2, oB))
        a(f"buffer_store_dwordx4 {vr(d,4)}, v{OA+tt}, s[12:15], s57 offen {st}")
        for j in range(4): a(f"v_mul_f32 v{rA+j}, v{fR}, v{rA+j}")
        a(cvt(d + 4, rA))
        a(f"buffer_store_dwordx2 {vr(d+4,2)}, v{ORR+tt}, s[12:15], s59 offen {st}")

def gen_k2(a, opt):
    K = "k2_kernel"
    NT = 6; NG = 22
    A2 = 128
    ac = lambda t, F: A2 + (t * 4 + F) * 4
    AF = lambda d, t: (d * NT + t) * 4
    WB = lambda b, F: 96 + (b * 4 + F) * 4
    VA_, VW, VD, VD2 = 4, 10, 14, 18
    VG = 22
    RING = 6; WLDS = RING * 4096
    a(f".globl {K}\n.p2align 8\n.type {K},@function\n{K}:")
    stamp(a, 0, opt)
    if opt.get("stamps"): a("s_memrealtime s[92:93]\ns_waitcnt lgkmcnt(0)\ns_mov_b32 s93, s92")
    a("""s_and_b32 s48, s2, 7
s_lshr_b32 s49, s2, 3
s_lshr_b32 s50, s48, 1
s_mul_i32 s50, s50, 28
s_add_u32 s50, s50, s49
s_cmp_ge_u32 s49, 28
s_cbranch_scc1 Lk2end
s_cmp_ge_u32 s50, 110
s_cbranch_scc1 Lk2end""")
    a("s_load_dwordx2 s[36:37], s[0:1], 16\ns_load_dwordx2 s[38:39], s[0:1], 40\ns_load_dwordx2 s[40:41], s[0:1], 56\ns_load_dwordx2 s[44:45], s[0:1], 72")
    code_prefetch(a, "Lk2end", T0, 46)
    a(f"""v_and_b32 v{VL}, 63, v0
v_lshrrev_b32 v1, 6, v0
v_lshrrev_b32 v{VR_}, 4, v{VL}
v_readfirstlane_b32 s20, v1
v_and_b32 v{VC}, 15, v0
s_mul_i32 s22, s50, 0x3334
s_lshr_b32 s22, s22, 16
s_mul_i32 s51, s22, 5
s_sub_u32 s23, s50, s51
s_and_b32 s51, s48, 1
s_mul_i32 s51, s51, 5
s_add_u32 s23, s23, s51""")
    t = T0 + 2
    a(f"s_mul_i32 s52, s22, {NT}\ns_mul_i32 s53, s20, {18*1024}\nv_lshlrev_b32 v{t}, 4, v{VL}")
    for tt in range(NT):
        a(f"s_add_u32 s54, s52, {tt}\ns_min_u32 s54, s54, 127\ns_mul_i32 s54, s54, {TSTR}\ns_add_u32 s54, s54, s53\nv_add_u32 v{VA_+tt}, s54, v{t}")
    a(f"""s_mul_i32 s33, s20, {WLDS}
v_lshrrev_b32 v{t}, 2, v{VL}
v_lshl_add_u32 v{t+1}, v{t}, 7, s33
v_and_b32 v{t+2}, 3, v{VL}
v_lshl_add_u32 v{t+1}, v{t+2}, 3, v{t+1}
v_bfe_u32 v{t+2}, v{t}, 1, 2""")
    for F in range(4): a(f"v_xor_b32 v{t+3}, {F}, v{t+2}\nv_lshl_add_u32 v{VW+F}, v{t+3}, 5, v{t+1}")
    a(f"""v_lshrrev_b32 v{t}, 3, v{VL}
v_and_b32 v{t+1}, 7, v{VL}
v_bfe_u32 v{t+2}, v{t}, 1, 2
v_lshlrev_b32 v{t+2}, 1, v{t+2}
v_xor_b32 v{t+1}, v{t+1}, v{t+2}
s_lshl_b32 s54, s23, 7
s_add_u32 s54, s54, 4096
v_lshl_add_u32 v{t+1}, v{t+1}, 4, s54
s_cmp_eq_u32 s20, 3
s_cselect_b32 s55, {4*1280}, 0""")
    for j in range(4):
        a(f"v_add_u32 v{t+2}, {8*j}, v{t}\nv_mul_u32_u24 v{t+2}, 1280, v{t+2}\nv_add_u32 v{t+2}, v{t+2}, v{t+1}\nv_subrev_u32 v{VD+j}, {1024*j}, v{t+2}")
        if j >= 2: a(f"v_add_u32 v{VD+j}, s55, v{VD+j}")
        a(f"""v_lshrrev_b32 v{t+2}, 2, v{t}
v_add_u32 v{t+2}, {2*(j&1)}, v{t+2}
v_mul_u32_u24 v{t+2}, 40, v{t+2}
v_and_b32 v{t+3}, 3, v{t}
v_add_u32 v{t+2}, v{t+2}, v{t+3}
v_add_u32 v{t+2}, {16+20*(j>>1)}, v{t+2}
v_mul_u32_u24 v{t+2}, 1280, v{t+2}
v_add_u32 v{t+2}, v{t+2}, v{t+1}
v_subrev_u32 v{VD2+j}, {1024*j}, v{t+2}""")
    a("s_waitcnt lgkmcnt(0)")
    a(f"""s_mov_b32 s12, s44
s_mov_b32 s13, s45
s_mov_b32 s14, {ACT_BYTES}
s_mov_b32 s15, 0x20000
s_mov_b32 s11, 0x20000
s_cmp_eq_u32 s20, 3
s_cselect_b32 s8, s36, s38
s_cselect_b32 s9, s37, s39
s_mov_b32 s10, {1728*1280+4096}
s_mov_b32 s31, {32*1280}
s_cselect_b32 s10, {640*1280+4096}, s10
s_cselect_b32 s31, {40*1280}, s31
s_cselect_b32 s21, 20, 18
s_cselect_b32 s57, 16, 99
s_mul_i32 s25, s20, {18*32*1280}
s_cselect_b32 s25, 0, s25
s_sub_u32 s8, s8, 4096
s_subb_u32 s9, s9, 0
s_mov_b32 s24, 0
s_mov_b32 s26, 0
s_mov_b32 s27, 0""")
    ldaux = opt.get("ldaux", "")
    def wd(slot):
        return [f"s_add_u32 m0, s33, {slot*4096}"] + [f"buffer_load_dwordx4 v{VD+j}, s[8:11], s25 offen offset:{1024*j} lds" for j in range(4)]
    uid = [0]
    def wadv():
        uid[0] += 1; L = f"Lk2sw{uid[0]}"
        return (f"s_add_u32 s25, s25, s31\ns_add_u32 s26, s26, 1\ns_cmp_ge_u32 s26, s21\ns_cselect_b32 s10, 0, s10\ns_cmp_lg_u32 s26, s57\ns_cbranch_scc1 {L}\n"
                + "".join(f"v_mov_b32 v{VD+j}, v{VD2+j}\n" for j in range(4)) + f"s_mov_b32 s25, 0\ns_mov_b32 s31, {160*1280}\n{L}:")
    def ad(d, tt): return f"buffer_load_dwordx4 {ar(AF(d,tt),4)}, v{VA_+tt}, s[12:15], s24 offen {ldaux}"
    aadv = "s_add_u32 s24, s24, 1024\ns_add_u32 s27, s27, 1\ns_cmp_ge_u32 s27, s21\ns_cselect_b32 s14, 0, s14"
    def rd(b, slot):
        out = []
        for F in range(4):
            out.append(f"ds_read_b64_tr_b16 {ar(WB(b,F),2)}, v{VW+F} offset:{slot*4096}")
            out.append(f"ds_read_b64_tr_b16 {ar(WB(b,F)+2,2)}, v{VW+F} offset:{slot*4096+2048}")
        return out
    def Wst(slot):
        for x in wd(slot): a(x)
        a(wadv())
    def Ast(d):
        for tt in range(NT): a(ad(d, tt))
        a(aadv)
    a(f"""s_add_u32 s16, s44, {GOFF}
s_addc_u32 s17, s45, 0
s_mov_b32 s18, 8192
s_mov_b32 s19, 0x20000
v_lshrrev_b32 v1, 3, v0
s_lshl_b32 s54, s52, 6
v_lshl_add_u32 v1, v1, 2, s54""")
    for i in range(3): a(f"buffer_load_dword v{VG+i}, v1, s[16:19], 0 offen offset:{128*i} {ldaux}")
    Wst(0); Ast(0); Wst(1); Wst(2); Ast(1); Ast(2); Wst(3); Wst(4); Wst(5)
    for i in range(NT * 16): a(f"v_mov_b32 v{A2+i}, 0")
    stamp(a, 1, opt)
    a("s_waitcnt vmcnt(38)")
    for x in rd(0, 0): a(x)
    a("s_mov_b32 s28, s21")
    stamp(a, 2, opt)
    a("Lk2loop:")
    for s in range(6):
        b = s & 1; d = s % 3
        a("s_waitcnt vmcnt(20) lgkmcnt(0)")
        main = [f"v_mfma_f32_16x16x32_bf16 {vr(ac(tt,F),4)}, {ar(WB(b,F),4)}, {ar(AF(d,tt),4)}, {vr(ac(tt,F),4)}" for tt in range(NT) for F in range(4)]
        w = wd(s)
        fill = rd(b ^ 1, (s + 1) % RING) + w + [wadv()] + [ad(d, tt) for tt in range(NT)] + [aadv]
        pos = [0, 0, 1, 1, 2, 2, 4, 4] + [4] + [5, 9, 13, 17] + [18] + [4 * tt + 3 for tt in range(NT)] + [23]
        seq = interleave(main, fill, pos=pos)
        for x in seq: a(x)
        if s in (1, 5):
            a(f"s_sub_u32 s28, s28, {2 if s == 1 else 4}\ns_cmp_eq_u32 s28, 0")
            a("s_cbranch_scc1 Lk2done" if s == 1 else "s_cbranch_scc0 Lk2loop")
    a("Lk2done:")
    stamp(a, 3, opt)
    PSZ = NT * 16 * 272
    a(f"""s_waitcnt vmcnt(0) lgkmcnt(0)
s_barrier
s_mul_i32 s54, s20, {PSZ}
v_mul_u32_u24 v1, 272, v{VC}
v_lshl_add_u32 v1, v{VR_}, 4, v1
v_add_u32 v1, s54, v1""")
    for tt in range(NT):
        for F in range(4): a(f"ds_write_b128 v1, {vr(ac(tt,F),4)} offset:{tt*16*272 + F*64}")
    a(f"""v_lshrrev_b32 v2, 3, v0
v_and_b32 v3, 7, v0
v_mul_u32_u24 v4, 272, v2
v_lshl_add_u32 v4, v3, 5, v4
v_add_u32 v5, {2*PSZ}, v4
s_mov_b32 s16, s40
s_mov_b32 s17, s41
s_mov_b32 s18, {2048*1280}
s_lshl_b32 s54, s23, 7
v_lshl_add_u32 v3, v3, 4, s54""")
    for i in range(3):
        a(f"""v_lshrrev_b32 v6, 4, v2
v_add_u32 v6, s52, v6
v_add_u32 v6, {2*i}, v6
v_and_b32 v7, 15, v2
v_lshlrev_b32 v7, 1, v7
v_and_b32 v8, 1, v6
v_add_u32 v7, v7, v8
v_lshrrev_b32 v6, 1, v6
v_lshl_add_u32 v6, v6, 5, v7
v_mul_u32_u24 v6, 1280, v6
v_add_u32 v{10+i}, v6, v3""")
    a("s_waitcnt lgkmcnt(0)\ns_barrier")
    R = 32
    for i in range(3):
        for p in range(4):
            base = "v4" if p < 2 else "v5"
            off = i * 32 * 272 + (p & 1) * PSZ
            a(f"ds_read_b128 {vr(R+i*32+p*8,4)}, {base} offset:{off}\nds_read_b128 {vr(R+i*32+p*8+4,4)}, {base} offset:{off+16}")
    for i in range(3):
        a(f"s_waitcnt lgkmcnt({min(15, 8*(2-i))})")
        r = R + i * 32
        a(f"v_sub_f32 v13, 1.0, v{VG+i}")
        for e in range(8): a(f"v_add_f32 v{r+e}, v{r+e}, v{r+8+e}")
        for e in range(8): a(f"v_add_f32 v{r+e}, v{r+e}, v{r+16+e}")
        for e in range(8): a(f"v_mul_f32 v{r+24+e}, v{VG+i}, v{r+24+e}")
        for e in range(8): a(f"v_fma_f32 v{r+e}, v{r+e}, v13, v{r+24+e}")
        for e in range(4): a(f"v_cvt_pk_bf16_f32 v{r+8+e}, v{r+2*e}, v{r+2*e+1}")
        a(f"buffer_store_dwordx4 {vr(r+8,4)}, v{10+i}, s[16:19], 0 offen")
    stamp(a, 4, opt)
    a("s_waitcnt vmcnt(0)")
    stamp(a, 5, opt)
    stamp_out(a, 6, opt, 1, "s20")
    a("Lk2end:\ns_endpgm")

HEADER = open("cdna_kernels/%s.s.ref" % NAME).read().split("; Override launch")[0]
def generate(opt):
    a = Asm()
    L = {"1": "; @launch kernel=k1_kernel grid=(256,1,1) block=(256,1,1) lds=%d\n" % (3 * SLOT + 2560),
         "2": "; @launch kernel=k2_kernel grid=(224,1,1) block=(256,1,1) lds=%d\n" % max(4 * 6 * 4096, 4 * 6 * 16 * 272),
         "p": "; @launch kernel=p_kernel grid=(80,1,1) block=(256,1,1) lds=0\n",
         "e": "; @launch kernel=e_kernel grid=(1,1,1) block=(64,1,1) lds=0\n"}
    order = opt.get("order", "12")
    hdr = HEADER + "".join(L[c] for c in order)
    a('.amdgcn_target "amdgcn-amd-amdhsa--gfx950"\n.text')
    gen_k1(a, opt)
    gen_k2(a, opt)
    tail = kd("k1_kernel", 512, 256) + kd("k2_kernel", 512, 256)
    if "e" in order:
        a(".globl e_kernel\n.p2align 8\n.type e_kernel,@function\ne_kernel:\ns_endpgm")
        tail += kd("e_kernel", 8, 8, 16)
    if "p" in order:
        a(".globl p_kernel\n.p2align 8\n.type p_kernel,@function\np_kernel:")
        a("s_load_dwordx4 s[4:7], s[0:1], 0\ns_load_dwordx2 s[8:9], s[0:1], 16\ns_load_dwordx4 s[12:15], s[0:1], 32")
        a("s_lshl_b32 s3, s2, 8\nv_add_u32 v1, s3, v0\nv_lshlrev_b32 v1, 7, v1\ns_waitcnt lgkmcnt(0)")
        for n, (b, sz) in enumerate(((4, 2048*1280), (6, 640*3840), (8, 640*1280), (12, 640*3456), (14, 1728*1280))):
            a(f"s_mov_b32 s{16+4*n}, s{b}\ns_mov_b32 s{17+4*n}, s{b+1}\ns_mov_b32 s{18+4*n}, {sz}\ns_mov_b32 s{19+4*n}, 0x20000")
            a(f"buffer_load_dword v{2+n}, v1, s[{16+4*n}:{19+4*n}], 0 offen")
        a("s_waitcnt vmcnt(0)\ns_endpgm")
        tail += kd("p_kernel", 8, 8, 48)
    return hdr + a.text() + tail

if __name__ == "__main__":
    import json
    opt = json.loads(sys.argv[2]) if len(sys.argv) > 2 else {}
    open(sys.argv[1], "w").write(generate(opt))
```

```python
import sys, struct
sys.path.insert(0, "work")
from asmlib import *

NAME = "gated_mix__sliding_local_dilated__dense_activation_relu__prompt"
TSTR = 74 * 1024
ACT_BYTES = 128 * TSTR
GOFF = 0xA00000
SLOT = 49152
def f32(x): return "0x%08x" % struct.unpack("<I", struct.pack("<f", x))[0]

def kd(name, vgpr, accum, sgpr=96):
    return f""".section .rodata,"a"
.p2align 6
.amdhsa_kernel {name}
  .amdhsa_next_free_vgpr {vgpr}
  .amdhsa_next_free_sgpr {sgpr}
  .amdhsa_accum_offset {accum}
  .amdhsa_group_segment_fixed_size 0
  .amdhsa_kernarg_size 80
  .amdhsa_user_sgpr_count 2
  .amdhsa_user_sgpr_kernarg_segment_ptr 1
  .amdhsa_system_sgpr_workgroup_id_x 1
.end_amdhsa_kernel
.text
"""

def code_prefetch(a, endlabel, vtmp, stmp):
    a(f"s_getpc_b64 {sr(stmp,2)}\nLpc{endlabel}:")
    nbytes = f"{endlabel}-Lpc{endlabel}"
    a(f"v_lshlrev_b32 {vr(vtmp)}, 7, v0")
    a(f"v_min_u32 {vr(vtmp)}, {nbytes}, {vr(vtmp)}")
    if not NOPF: a(f"global_load_dword {vr(vtmp+1)}, {vr(vtmp)}, {sr(stmp,2)}")

def stamp(a, idx, opt):
    if opt.get("stamps"):
        a(f"s_memtime s[{80+2*idx}:{81+2*idx}]")

def stamp_out(a, n, opt, slot, wave_s):
    if not opt.get("stamps"): return
    a("s_memrealtime s[94:95]\ns_waitcnt lgkmcnt(0)")
    a("s_load_dwordx2 s[76:77], s[0:1], 72\ns_waitcnt lgkmcnt(0)")
    a(f"s_add_u32 s76, s76, {0xC00000 + slot*0x10000}\ns_addc_u32 s77, s77, 0\ns_mov_b32 s78, 0x10000\ns_mov_b32 s79, 0x20000")
    a(f"s_lshl_b32 s75, s2, 2\ns_add_u32 s75, s75, {wave_s}\ns_lshl_b32 s75, s75, 6")
    a("s_mov_b64 exec, 1\nv_mov_b32 v1, 0")
    for i in range(8):
        a(f"v_mov_b32 v2, s{80+2*i}\nbuffer_store_dword v2, v1, s[76:79], s75 offen offset:{4*i}")
    a("v_mov_b32 v2, s93\nbuffer_store_dword v2, v1, s[76:79], s75 offen offset:32")

ACC = 128
def acc(t, F): return ACC + (t * 8 + F) * 4
def XF(b, t): return b * 48 + t * 4
def WF(b, F): return b * 48 + 16 + F * 4
VXA = 4
VWA = 6
VDX = 14
VDW = 18
VL, VR_, VC = 26, 27, 28
T0 = 30

def k1_loop(a, att, opt):
    tag = "A" if att else "F"
    def mf(b):
        out = []
        for t in range(4):
            for F in range(8):
                A, B = (ar(WF(b, F), 4), ar(XF(b, t), 4))
                if att and F >= 5: A, B = B, A
                out.append(f"v_mfma_f32_16x16x32_bf16 {vr(acc(t,F),4)}, {A}, {B}, {vr(acc(t,F),4)}")
        return out
    def reads(b, u):
        out = []
        xs = [f"ds_read_b128 {ar(XF(b,t),4)}, {vr(VXA+u)} offset:{2048*t}" for t in range(4)]
        ws = []
        for F in range(8):
            ws.append(f"ds_read_b64_tr_b16 {ar(WF(b,F),2)}, {vr(VWA+F)} offset:{16384*u}")
            ws.append(f"ds_read_b64_tr_b16 {ar(WF(b,F)+2,2)}, {vr(VWA+F)} offset:{16384*u+2048}")
        return xs[:1] + ws + xs[1:]
    def dx(j): return f"buffer_load_dwordx4 {vr(VDX+j)}, s[4:7], s24 offen offset:{1024*j} lds"
    def dw(j): return f"buffer_load_dwordx4 {vr(VDW+j)}, s[8:11], s25 offen offset:{1024*(j&3)} lds"
    adv = ["s_add_u32 s26, s26, 1\ns_cmp_eq_u32 s26, 10", "s_cselect_b32 s26, 0, s26\ns_lshl_b32 s24, s26, 7",
           "s_mul_i32 s25, s26, s31\ns_add_u32 s27, s27, %d" % SLOT, "s_cmp_eq_u32 s27, s32\ns_cselect_b32 s27, s33, s27",
           "s_add_u32 s30, s30, 1\ns_cmp_ge_u32 s30, 10", "s_cselect_b32 s6, 0, s6\ns_cselect_b32 s10, 0, s10"]
    H0 = ["s_mov_b32 m0, s27", dx(0), dx(1), dx(2), dx(3), "s_add_u32 m0, s27, s34", dw(0), dw(1)]
    H1 = [dw(2), dw(3), "s_add_u32 m0, m0, 4096", dw(4), dw(5), dw(6), dw(7)]
    for st in range(3):
        for x in H0: a(x)
        if st < 2:
            for x in H1: a(x)
            for x in adv: a(x)
    for i in range(128): a(f"v_mov_b32 v{ACC+i}, 0")
    stamp(a, 1, opt)
    a("s_waitcnt vmcnt(18)\ns_barrier")
    for x in reads(0, 0): a(x)
    a("s_mov_b32 s28, 10\ns_mov_b32 s29, %d\ns_mov_b32 s35, 0\ns_mov_b32 s69, s29\ns_mov_b32 s68, %d" % (SLOT, (-2 * SLOT) & 0xffffffff))
    stamp(a, 2, opt)
    a("s_waitcnt lgkmcnt(0)")
    a(f"Lk1loop{tag}:")
    rd = reads(1, 1)
    upd = [f"v_add_u32 {vr(VXA+i)}, s29, {vr(VXA+i)}" for i in range(10)]
    fill = rd + upd + H1 + adv
    pos = list(range(20)) + [20 + i // 1 for i in range(10)] + opt.get("posH1", [2, 7, 10, 12, 17, 22, 26]) + [27, 28, 28, 29, 30, 30]
    for x in interleave(mf(0), fill, pos=pos): a(x)
    a("s_waitcnt vmcnt(12) lgkmcnt(0)\ns_barrier")
    rd = reads(0, 0)
    nxt = ["s_add_u32 s35, s35, 1\ns_cmp_eq_u32 s35, 2", "s_cselect_b32 s29, s68, s69", "s_cmp_eq_u32 s35, 3\ns_cselect_b32 s35, 0, s35", "s_sub_u32 s28, s28, 1\ns_cmp_lg_u32 s28, 0"]
    fill = rd + H0 + nxt
    pos = list(range(20)) + opt.get("posH0", [0, 2, 7, 12, 17, 20, 22, 26]) + [27, 28, 29, 30]
    for x in interleave(mf(1), fill, pos=pos): a(x)
    a("s_waitcnt lgkmcnt(0)")
    a(f"s_cbranch_scc1 Lk1loop{tag}")

def gen_k1(a, opt):
    K = "k1_kernel"
    a(f".globl {K}\n.p2align 8\n.type {K},@function\n{K}:")
    stamp(a, 0, opt)
    if opt.get("stamps"): a("s_memrealtime s[92:93]\ns_waitcnt lgkmcnt(0)\ns_mov_b32 s93, s92")
    a("s_cmp_ge_u32 s2, 256\ns_cbranch_scc1 Lk1end")
    a("s_load_dwordx4 s[36:39], s[0:1], 0\ns_load_dwordx2 s[40:41], s[0:1], 32\ns_load_dwordx2 s[42:43], s[0:1], 48\ns_load_dwordx2 s[44:45], s[0:1], 72")
    code_prefetch(a, "Lk1end", T0, 46)
    a(f"""v_and_b32 v{VL}, 63, v0
v_lshrrev_b32 v1, 6, v0
v_lshrrev_b32 v{VR_}, 4, v{VL}
v_readfirstlane_b32 s20, v1
v_and_b32 v{VC}, 15, v0
s_and_b32 s48, s2, 7
s_lshr_b32 s49, s2, 3
s_lshr_b32 s50, s48, 2
s_and_b32 s51, s48, 3
s_lshr_b32 s52, s20, 1
s_and_b32 s53, s20, 1""")
    a("""s_cmp_ge_u32 s49, 18
s_cbranch_scc1 Lk1decF
s_mov_b32 s21, 1
s_mul_i32 s22, s50, 9
s_lshr_b32 s54, s49, 1
s_add_u32 s22, s22, s54
s_lshl_b32 s23, s51, 1
s_and_b32 s54, s49, 1
s_add_u32 s23, s23, s54
s_mul_i32 s55, s22, 114
s_sub_u32 s55, s55, 14
s_mov_b32 s31, %d
s_mul_i32 s54, s54, 5
s_add_u32 s26, s22, s54
s_branch Lk1dec2
Lk1decF:
s_mov_b32 s21, 0
s_mul_i32 s54, s51, 14
s_add_u32 s54, s54, s49
s_sub_u32 s54, s54, 18
s_lshr_b32 s23, s54, 3
s_and_b32 s54, s54, 7
s_lshl_b32 s22, s50, 3
s_add_u32 s22, s22, s54
s_lshl_b32 s55, s22, 7
s_mov_b32 s31, %d
s_mul_i32 s54, s23, 3
s_add_u32 s26, s22, s54
s_add_u32 s26, s26, 2
Lk1dec2:""" % (64 * 3840, 64 * 3456))
    if opt.get("rot", 1):
        a("s_mul_i32 s54, s26, 0x199a\ns_lshr_b32 s54, s54, 16\ns_mul_i32 s54, s54, 10\ns_sub_u32 s26, s26, s54")
    else:
        a("s_mov_b32 s26, 0")
    a("s_lshl_b32 s24, s26, 7\ns_mul_i32 s25, s26, s31\ns_mov_b32 s30, 0")
    a(f"s_lshl_b32 s33, s20, 12\ns_mov_b32 s27, s33\ns_add_u32 s32, s33, {3*SLOT}\ns_lshl_b32 s34, s20, 12\ns_add_u32 s34, s34, 16384")
    t = T0 + 2
    a(f"v_lshrrev_b32 v{t}, 3, v{VL}\nv_and_b32 v{t+1}, 7, v{VL}\ns_lshl_b32 s54, s20, 5")
    for j in range(4):
        a(f"""v_add_u32 v{t+2}, s54, v{t}
v_add_u32 v{t+2}, {8*j}, v{t+2}
v_bfe_u32 v{t+3}, v{t+2}, 1, 3
v_xor_b32 v{t+3}, v{t+3}, v{t+1}
v_and_b32 v{t+4}, 63, v{t+2}
v_lshrrev_b32 v{t+2}, 6, v{t+2}
v_lshl_add_u32 v{t+2}, v{t+4}, 1, v{t+2}
v_add_u32 v{t+2}, s55, v{t+2}
v_max_i32 v{t+2}, 0, v{t+2}
v_min_i32 v{t+2}, 2047, v{t+2}
v_mul_u32_u24 v{t+2}, 1280, v{t+2}
v_lshl_add_u32 v{t+2}, v{t+3}, 4, v{t+2}
v_add_u32 v{VDX+j}, {4096-1024*j}, v{t+2}""")
    a(f"""s_lshl_b32 s54, s52, 13
v_lshl_add_u32 v{t}, v{VC}, 7, s54
v_lshrrev_b32 v{t+1}, 1, v{VC}
v_xor_b32 v{t+1}, v{t+1}, v{VR_}
v_lshl_add_u32 v{VXA}, v{t+1}, 4, v{t}
v_xor_b32 v{VXA+1}, 64, v{VXA}""")
    a(f"""v_bfe_u32 v{t+3}, v{VL}, 2, 2
v_lshl_add_u32 v{t}, v{VR_}, 3, v{t+3}
v_lshlrev_b32 v{t}, 9, v{t}
v_add_u32 v{t}, 16384, v{t}
v_and_b32 v{t+1}, 1, v{VR_}
v_lshl_add_u32 v{t+1}, v{t+1}, 2, v{t+3}
v_lshlrev_b32 v{t+1}, 5, v{t+1}
v_and_b32 v{t+2}, 3, v{VL}""")
    a(f"v_lshrrev_b32 v{t+4}, 5, v{VL}\nv_and_b32 v{t+5}, 31, v{VL}\ns_lshl_b32 s56, s20, 4")
    a("s_waitcnt lgkmcnt(0)")
    a(f"""s_sub_u32 s4, s36, 4096
s_subb_u32 s5, s37, 0
s_mov_b32 s6, {2048*1280+4096}
s_mov_b32 s7, 0x20000
s_mov_b32 s12, s44
s_mov_b32 s13, s45
s_mov_b32 s14, {ACT_BYTES}
s_mov_b32 s15, 0x20000
s_mov_b32 s11, 0x20000
s_cmp_eq_u32 s21, 0
s_cbranch_scc1 Lk1F""")
    def wdma(att):
        for j in range(8):
            f_hi = ((2 * j) >> 3) & 1
            a(f"""v_add_u32 v{t+6}, {((2*j)&3) | (f_hi<<2)}, v{t+4}
v_lshlrev_b32 v{t+6}, 1, v{t+6}
v_xor_b32 v{t+6}, v{t+6}, v{t+5}
v_add_u32 v{t+7}, s56, v{t+4}
v_add_u32 v{t+7}, {2*j}, v{t+7}
v_mul_u32_u24 v{t+7}, {3840 if att else 3456}, v{t+7}""")
            if att:
                a(f"""v_cmp_le_u32 vcc, 11, v{t+6}
v_cndmask_b32 v{t+8}, 0, 1, vcc
v_cmp_le_u32 vcc, 21, v{t+6}
v_cndmask_b32 v{t+9}, 0, 1, vcc
v_mul_u32_u24 v{t+10}, 11, v{t+8}
v_sub_u32 v{t+6}, v{t+6}, v{t+10}
v_mul_u32_u24 v{t+10}, 10, v{t+9}
v_sub_u32 v{t+6}, v{t+6}, v{t+10}
v_min_u32 v{t+6}, 9, v{t+6}
v_add_u32 v{t+8}, v{t+8}, v{t+9}
v_mul_u32_u24 v{t+8}, 1280, v{t+8}
v_lshl_add_u32 v{t+6}, v{t+6}, 4, v{t+8}
v_add_u32 v{t+6}, s57, v{t+6}""")
            else:
                a(f"""v_lshl_add_u32 v{t+6}, v{t+6}, 4, s57
v_min_u32 v{t+6}, 3440, v{t+6}""")
            a(f"v_add_u32 v{t+6}, v{t+6}, v{t+7}\nv_add_u32 v{VDW+j}, {4096-1024*(j&3)}, v{t+6}")
    a(f"s_sub_u32 s8, s38, 4096\ns_subb_u32 s9, s39, 0\ns_mov_b32 s10, {640*3840+4096}\ns_mul_i32 s57, s23, 160")
    wdma(True)
    a(f"s_mul_i32 s54, s53, 80\nv_lshl_add_u32 v{t+6}, v{t+2}, 3, s54")
    a(f"""v_and_b32 v{t+7}, 1, v{t+2}
v_mul_u32_u24 v{t+7}, 40, v{t+7}
v_add_u32 v{t+7}, s54, v{t+7}
v_lshrrev_b32 v{t+8}, 1, v{t+2}
v_mul_u32_u24 v{t+8}, 176, v{t+8}
v_add_u32 v{t+8}, v{t+8}, v{t+7}""")
    for F, (src, off) in enumerate([(6, 0), (6, 40), (6, 176), (6, 216), (8, 32), (6, 336), (6, 376), (7, 368)]):
        a(f"v_add_u32 v{t+9}, {off}, v{t+src}\nv_xor_b32 v{t+9}, v{t+9}, v{t+1}\nv_add_u32 v{VWA+F}, v{t+9}, v{t}")
    k1_loop(a, True, opt)
    stamp(a, 3, opt)
    att_epilogue(a, opt)
    stamp(a, 4, opt)
    a("s_branch Lk1fin")
    a("Lk1F:")
    a(f"s_sub_u32 s8, s40, 4096\ns_subb_u32 s9, s41, 0\ns_mov_b32 s10, {640*3456+4096}\ns_lshl_b32 s57, s23, 9")
    wdma(False)
    a(f"s_lshl_b32 s54, s53, 8\nv_lshl_add_u32 v{t+6}, v{t+2}, 3, s54")
    for F in range(8):
        a(f"v_add_u32 v{t+9}, {32*F}, v{t+6}\nv_xor_b32 v{t+9}, v{t+9}, v{t+1}\nv_add_u32 v{VWA+F}, v{t+9}, v{t}")
    k1_loop(a, False, opt)
    stamp(a, 3, opt)
    ffn_epilogue(a, opt)
    stamp(a, 4, opt)
    a("Lk1fin:")
    a("s_waitcnt vmcnt(0)")
    stamp(a, 5, opt)
    stamp_out(a, 6, opt, 0, "s20")
    a("Lk1end:\ns_endpgm")

def ffn_epilogue(a, opt):
    st = opt.get("staux", "")
    a(f"""s_lshl_b32 s54, s22, 3
s_add_u32 s54, s54, s52
s_mul_i32 s54, s54, {TSTR}
s_lshl_b32 s56, s23, 1
s_add_u32 s56, s56, s53
s_lshl_b32 s56, s56, 12
s_add_u32 s54, s54, s56
v_lshlrev_b32 v1, 4, v{VL}
v_mov_b32 v2, v1
s_cmp_eq_u32 s56, {13*4096}
s_cbranch_scc0 Lk1Fw
v_mov_b32 v2, 0x7ffffff0
Lk1Fw:""")
    k = 0
    for tt in range(4):
        for u in range(4):
            d = T0 + 4 * (k % 4); k += 1
            for h in range(2):
                s = acc(tt, 2 * u + h)
                a(f"v_cvt_pk_bf16_f32 v{d+2*h}, v{s}, v{s+1}\nv_cvt_pk_bf16_f32 v{d+2*h+1}, v{s+2}, v{s+3}")
            for i in range(4): a(f"v_pk_max_i16 v{d+i}, v{d+i}, 0")
            a(f"buffer_store_dwordx4 {vr(d,4)}, v{1 if u < 2 else 2}, s[12:15], s54 offen offset:{1024*u} {st}")
        if tt < 3: a(f"s_add_u32 s54, s54, {2*TSTR}")
    a("s_cmp_lg_u32 s23, 6\ns_cbranch_scc1 Lk1Fg")
    a(f"""s_mov_b32 s6, {2048*1280+4096}
s_mov_b32 s16, s42
s_mov_b32 s17, s43
s_mov_b32 s18, 1280
s_mov_b32 s19, 0x20000
s_lshl_b32 s54, s53, 6
s_add_u32 s54, s54, s52
s_add_u32 s54, s54, s55
v_lshl_add_u32 v1, v{VC}, 1, s54
v_mul_u32_u24 v1, 1280, v1
v_lshlrev_b32 v3, 4, v{VR_}
v_add_u32 v1, v1, v3
v_add_u32 v1, 4096, v1
v_add_u32 v2, {32*1280}, v1""")
    for u in range(20):
        a(f"buffer_load_dwordx4 {vr(128+4*u,4)}, v3, s[16:19], 0 offen offset:{64*u}")
        a(f"buffer_load_dwordx4 {ar(8*u,4)}, v1, s[4:7], 0 offen offset:{64*u}")
        a(f"buffer_load_dwordx4 {ar(8*u+4,4)}, v2, s[4:7], 0 offen offset:{64*u}")
    a("s_waitcnt vmcnt(0)")
    for u in range(20):
        for h in range(2):
            c = "0" if u == 0 else vr(T0 + 4 * h, 4)
            a(f"v_mfma_f32_16x16x32_bf16 {vr(T0+4*h,4)}, {vr(128+4*u,4)}, {ar(8*u+4*h,4)}, {c}")
    a(f"""s_lshl_b32 s54, s22, 3
s_lshl_b32 s56, s53, 2
s_add_u32 s54, s54, s56
s_add_u32 s54, s54, s52
s_lshl_b32 s54, s54, 6
s_add_u32 s16, s44, {GOFF}
s_addc_u32 s17, s45, 0
s_mov_b32 s18, 8192
v_lshlrev_b32 v1, 2, v{VL}
v_cmp_gt_u32 vcc, 16, v{VL}
v_mov_b32 v2, 0x7ffffff0
v_cndmask_b32 v1, v2, v1, vcc""")
    for h in range(2):
        z = T0 + 4 * h
        a(f"""v_mul_f32 v{z}, {f32(-1.4426950408889634)}, v{z}
v_exp_f32 v{z}, v{z}
v_add_f32 v{z}, 1.0, v{z}
v_rcp_f32 v{z}, v{z}
buffer_store_dword v{z}, v1, s[16:19], s54 offen offset:{128*h} {st}""")
    a("Lk1Fg:")

def att_epilogue(a, opt):
    st = opt.get("staux", "")
    NEG = f32(-1.0e30)
    CS = f32(20 ** -0.5 * 1.4426950408889634)
    BC, BP, B0, MK = 4, 8, 12, 16
    t = 18
    a(f"s_mov_b32 s58, {CS}\nv_mov_b32 v{t}, {NEG}\ns_cmp_eq_u32 s22, 0\ns_cselect_b32 s54, 7, 0")
    for j in range(4):
        a(f"""v_lshl_add_u32 v{t+1}, v{VR_}, 2, {j}
v_sub_u32 v{t+2}, v{VC}, v{t+1}
v_cmp_gt_u32 vcc, 8, v{t+2}
v_cndmask_b32 v{BC+j}, v{t}, 0, vcc
v_cmp_gt_i32 vcc, -8, v{t+2}
v_cndmask_b32 v{BP+j}, v{t}, 0, vcc
v_cmp_le_u32 vcc, s54, v{t+1}
v_cndmask_b32 v{B0+j}, v{t}, v{BC+j}, vcc
v_cmp_le_i32 vcc, 0, v{t+2}
v_cndmask_b32 v{t+3+(j&1)}, 0, -1, vcc""")
        if j & 1: a(f"v_bfi_b32 v{MK+(j>>1)}, s59, v{t+3}, v{t+4}" if False else f"v_and_b32 v{t+3}, 0xffff, v{t+3}\nv_and_b32 v{t+4}, 0xffff0000, v{t+4}\nv_or_b32 v{MK+(j>>1)}, v{t+3}, v{t+4}")
    a("s_mov_b64 s[60:61], 0xffff\ns_mov_b32 s62, 0xffff0000\ns_mov_b32 s63, 0\ns_mov_b32 s64, 0xff00ff00\ns_mov_b32 s65, 0xff00ff00")
    KA, KB, QA, QB = 32, 48, 64, 80
    VA, VB, VRR = 96, 104, 112
    ZERO = 120
    a(f"v_mov_b32 v{ZERO}, 0\nv_mov_b32 v{ZERO+1}, 0\nv_mov_b32 v{ZERO+2}, 0x3f803f80")
    cvt = lambda d, s: f"v_cvt_pk_bf16_f32 v{d}, v{s}, v{s+1}\nv_cvt_pk_bf16_f32 v{d+1}, v{s+2}, v{s+3}"
    for tt in range(4):
        a(cvt(KA + 4 * tt + 2, acc(tt, 4)))
    for tt in range(4):
        a(cvt(QA + 4 * tt, acc(tt, 0))); a(cvt(QB + 4 * tt, acc(tt, 1)))
        a(f"v_mov_b32 v{QB+4*tt+2}, v{KA+4*tt+2}\nv_mov_b32 v{QB+4*tt+3}, v{KA+4*tt+3}")
        a(cvt(KA + 4 * tt, acc(tt, 2))); a(cvt(KB + 4 * tt, acc(tt, 3)))
        a(f"v_permlane32_swap_b32 v{QB+4*tt+2}, v{KA+4*tt+2}\nv_permlane32_swap_b32 v{QB+4*tt+3}, v{KA+4*tt+3}")
        a(cvt(VA + 2 * tt, acc(tt, 5))); a(cvt(VB + 2 * tt, acc(tt, 6))); a(cvt(VRR + 2 * tt, acc(tt, 7)))
        for i in (2, 3):
            a(f"""v_mov_b32 v{KB+4*tt+i}, v{KA+4*tt+i}
v_cndmask_b32 v{QA+4*tt+i}, 0, v{QB+4*tt+i}, s[60:61]
v_cndmask_b32 v{QB+4*tt+i}, 0, v{QB+4*tt+i}, s[62:63]""")
        for i in (0, 1): a(f"v_cndmask_b32 v{VRR+2*tt+i}, v{VRR+2*tt+i}, v{ZERO+2}, s[64:65]")
    mf = "v_mfma_f32_16x16x32_bf16"
    for tt in range(4):
        for h, (Kx, Qx) in enumerate(((KA, QA), (KB, QB))):
            a(f"{mf} {vr(acc(tt,2*h),4)}, {vr(Kx+4*tt,4)}, {vr(Qx+4*tt,4)}, {vr(B0 if tt == 0 else BC,4)}")
            if tt: a(f"{mf} {vr(acc(tt,2*h+1),4)}, {vr(Kx+4*(tt-1),4)}, {vr(Qx+4*tt,4)}, {vr(BP,4)}")
    OA, ORR = 20, 124
    a(f"""s_mul_i32 s54, s22, 57
s_sub_u32 s54, s54, 7
s_lshl_b32 s56, s23, 1
s_add_u32 s56, s56, s53
s_add_u32 s57, s56, 54
s_lshl_b32 s57, s57, 10
s_lshr_b32 s59, s56, 2
s_add_u32 s59, s59, 70
s_lshl_b32 s59, s59, 10
s_and_b32 s56, s56, 3
s_lshl_b32 s56, s56, 8
s_add_u32 s59, s59, s56
s_mov_b32 s56, {TSTR}
v_mov_b32 v1, 0x7ffffff0""")
    for tt in range(4):
        a(f"""v_add_u32 v2, {16*tt}, v{VC}
v_add_u32 v3, s54, v2
v_cmp_lt_u32 vcc, 6, v2
v_cmp_gt_i32 s[66:67], 1024, v3
s_and_b64 vcc, vcc, s[66:67]
v_ashrrev_i32 v2, 4, v3
v_lshl_add_u32 v2, v2, 1, s52
v_mul_lo_u32 v2, v2, s56
v_and_b32 v3, 15, v3
v_lshl_add_u32 v2, v3, 4, v2
v_lshl_add_u32 v3, v{VR_}, 8, v2
v_cndmask_b32 v{OA+tt}, v1, v3, vcc
v_lshl_add_u32 v3, v{VR_}, 3, v2
v_cndmask_b32 v3, v1, v3, vcc
v_cmp_gt_u32 vcc, 32, v{VL}
v_cndmask_b32 v{ORR+tt}, v1, v3, vcc""".replace("v_cmp_gt_i32 s[66:67], 1024, v3", "v_mov_b32 v29, 0x400\nv_cmp_gt_i32 s[66:67], v29, v3"))
    M = 64
    S = lambda tt, h: acc(tt, 2 * h)
    for tt in range(1, 4):
        for h in range(2):
            for j in range(4): a(f"v_max_f32 v{S(tt,h)+j}, v{S(tt,h)+j}, v{S(tt,h)+4+j}")
    for tt in range(4):
        for h in range(2):
            s = S(tt, h); m = M + 4 * tt + h
            a(f"v_max3_f32 v{m}, v{s}, v{s+1}, v{s+2}\nv_max_f32 v{m}, v{m}, v{s+3}")
    for tt in range(4): a(f"v_permlane32_swap_b32 v{M+4*tt}, v{M+4*tt+1}")
    for tt in range(4): a(f"v_max_f32 v{M+4*tt}, v{M+4*tt}, v{M+4*tt+1}")
    for tt in range(4): a(f"v_mov_b32 v{M+4*tt+1}, v{M+4*tt}")
    for tt in range(4): a(f"v_permlane16_swap_b32 v{M+4*tt}, v{M+4*tt+1}")
    for tt in range(4): a(f"v_max_f32 v{M+4*tt}, v{M+4*tt}, v{M+4*tt+1}")
    for tt in range(4): a(f"v_mul_f32 v{M+4*tt}, s58, v{M+4*tt}")
    for tt in range(4): a(f"v_mov_b32 v{M+4*tt+1}, v{M+4*tt}")
    for tt in range(4): a(f"v_permlane32_swap_b32 v{M+4*tt}, v{M+4*tt+1}")
    PP = lambda tt, h: acc(tt, 4 + h)
    for tt in range(4):
        for h in range(2):
            s = S(tt, h); m = M + 4 * tt + h; p = PP(tt, h)
            for j in range(4): a(f"v_fma_f32 v{s+j}, v{s+j}, s58, -v{m}")
            for j in range(4): a(f"v_exp_f32 v{s+j}, v{s+j}")
        for h in range(2):
            s = S(tt, h); p = PP(tt, h)
            if tt == 0:
                a(cvt(p, s)); a(f"v_mov_b32 v{p+2}, 0\nv_mov_b32 v{p+3}, 0")
            else:
                a(cvt(p, s))
                a(f"v_and_b32 v{p+2}, v{MK}, v{p}\nv_and_b32 v{p+3}, v{MK+1}, v{p+1}\nv_xor_b32 v{p}, v{p}, v{p+2}\nv_xor_b32 v{p+1}, v{p+1}, v{p+3}")
        vo = 2 * max(tt - 1, 0)
        a(f"{mf} {vr(acc(tt,2),4)}, {vr(VRR+vo,4)}, {vr(PP(tt,0),4)}, 0")
        a(f"{mf} {vr(acc(tt,3),4)}, {vr(VRR+vo,4)}, {vr(PP(tt,1),4)}, 0")
        a(f"{mf} {vr(acc(tt,0),4)}, {vr(VA+vo,4)}, {vr(PP(tt,0),4)}, 0")
        a(f"{mf} {vr(acc(tt,1),4)}, {vr(VB+vo,4)}, {vr(PP(tt,1),4)}, 0")
    Fm = 32
    for tt in range(4): a(f"v_mov_b32 v{Fm+4*tt+2}, v{acc(tt,2)}\nv_mov_b32 v{Fm+4*tt}, v{acc(tt,3)}")
    for tt in range(4): a(f"v_permlane32_swap_b32 v{Fm+4*tt+2}, v{Fm+4*tt}")
    for tt in range(4): a(f"v_rcp_f32 v{Fm+4*tt}, v{Fm+4*tt}")
    for tt in range(4): a(f"v_mov_b32 v{Fm+4*tt+1}, v{Fm+4*tt}")
    for tt in range(4): a(f"v_permlane32_swap_b32 v{Fm+4*tt}, v{Fm+4*tt+1}")
    for tt in range(4):
        fA, fB, fR = Fm + 4 * tt, Fm + 4 * tt + 1, Fm + 4 * tt + 3
        oA, oB, rA, rB = acc(tt, 0), acc(tt, 1), acc(tt, 2), acc(tt, 3)
        d = acc(tt, 6)
        a(f"v_cndmask_b32 v{fR}, v{fB}, v{fA}, s[60:61]")
        for j in range(4): a(f"v_mul_f32 v{oA+j}, v{fA}, v{oA+j}\nv_mul_f32 v{oB+j}, v{fB}, v{oB+j}\nv_cndmask_b32 v{rA+j}, v{rB+j}, v{rA+j}, s[60:61]")
        a(cvt(d, oA)); a(cvt(d + 2, oB))
        a(f"buffer_store_dwordx4 {vr(d,4)}, v{OA+tt}, s[12:15], s57 offen {st}")
        for j in range(4): a(f"v_mul_f32 v{rA+j}, v{fR}, v{rA+j}")
        a(cvt(d + 4, rA))
        a(f"buffer_store_dwordx2 {vr(d+4,2)}, v{ORR+tt}, s[12:15], s59 offen {st}")

def gen_k2(a, opt):
    K = "k2_kernel"
    NT = 6; NG = 22
    A2 = 128
    ac = lambda t, F: A2 + (t * 4 + F) * 4
    AF = lambda d, t: (d * NT + t) * 4
    WB = lambda b, F: 96 + (b * 4 + F) * 4
    VA_, VW, VD, VD2 = 4, 10, 14, 18
    VG = 22
    RING = 6; WLDS = RING * 4096
    a(f".globl {K}\n.p2align 8\n.type {K},@function\n{K}:")
    stamp(a, 0, opt)
    if opt.get("stamps"): a("s_memrealtime s[92:93]\ns_waitcnt lgkmcnt(0)\ns_mov_b32 s93, s92")
    a("""s_and_b32 s48, s2, 7
s_lshr_b32 s49, s2, 3
s_lshr_b32 s50, s48, 1
s_mul_i32 s50, s50, 28
s_add_u32 s50, s50, s49
s_cmp_ge_u32 s49, 28
s_cbranch_scc1 Lk2end
s_cmp_ge_u32 s50, 110
s_cbranch_scc1 Lk2end""")
    a("s_load_dwordx2 s[36:37], s[0:1], 16\ns_load_dwordx2 s[38:39], s[0:1], 40\ns_load_dwordx2 s[40:41], s[0:1], 56\ns_load_dwordx2 s[44:45], s[0:1], 72")
    code_prefetch(a, "Lk2end", T0, 46)
    a(f"""v_and_b32 v{VL}, 63, v0
v_lshrrev_b32 v1, 6, v0
v_lshrrev_b32 v{VR_}, 4, v{VL}
v_readfirstlane_b32 s20, v1
v_and_b32 v{VC}, 15, v0
s_mul_i32 s22, s50, 0x3334
s_lshr_b32 s22, s22, 16
s_mul_i32 s51, s22, 5
s_sub_u32 s23, s50, s51
s_and_b32 s51, s48, 1
s_mul_i32 s51, s51, 5
s_add_u32 s23, s23, s51""")
    t = T0 + 2
    a(f"s_mul_i32 s52, s22, {NT}\ns_mul_i32 s53, s20, {18*1024}\nv_lshlrev_b32 v{t}, 4, v{VL}")
    for tt in range(NT):
        a(f"s_add_u32 s54, s52, {tt}\ns_min_u32 s54, s54, 127\ns_mul_i32 s54, s54, {TSTR}\ns_add_u32 s54, s54, s53\nv_add_u32 v{VA_+tt}, s54, v{t}")
    a(f"""s_mul_i32 s33, s20, {WLDS}
v_lshrrev_b32 v{t}, 2, v{VL}
v_lshl_add_u32 v{t+1}, v{t}, 7, s33
v_and_b32 v{t+2}, 3, v{VL}
v_lshl_add_u32 v{t+1}, v{t+2}, 3, v{t+1}
v_bfe_u32 v{t+2}, v{t}, 1, 2""")
    for F in range(4): a(f"v_xor_b32 v{t+3}, {F}, v{t+2}\nv_lshl_add_u32 v{VW+F}, v{t+3}, 5, v{t+1}")
    a(f"""v_lshrrev_b32 v{t}, 3, v{VL}
v_and_b32 v{t+1}, 7, v{VL}
v_bfe_u32 v{t+2}, v{t}, 1, 2
v_lshlrev_b32 v{t+2}, 1, v{t+2}
v_xor_b32 v{t+1}, v{t+1}, v{t+2}
s_lshl_b32 s54, s23, 7
s_add_u32 s54, s54, 4096
v_lshl_add_u32 v{t+1}, v{t+1}, 4, s54
s_cmp_eq_u32 s20, 3
s_cselect_b32 s55, {4*1280}, 0""")
    for j in range(4):
        a(f"v_add_u32 v{t+2}, {8*j}, v{t}\nv_mul_u32_u24 v{t+2}, 1280, v{t+2}\nv_add_u32 v{t+2}, v{t+2}, v{t+1}\nv_subrev_u32 v{VD+j}, {1024*j}, v{t+2}")
        if j >= 2: a(f"v_add_u32 v{VD+j}, s55, v{VD+j}")
        a(f"""v_lshrrev_b32 v{t+2}, 2, v{t}
v_add_u32 v{t+2}, {2*(j&1)}, v{t+2}
v_mul_u32_u24 v{t+2}, 40, v{t+2}
v_and_b32 v{t+3}, 3, v{t}
v_add_u32 v{t+2}, v{t+2}, v{t+3}
v_add_u32 v{t+2}, {16+20*(j>>1)}, v{t+2}
v_mul_u32_u24 v{t+2}, 1280, v{t+2}
v_add_u32 v{t+2}, v{t+2}, v{t+1}
v_subrev_u32 v{VD2+j}, {1024*j}, v{t+2}""")
    a("s_waitcnt lgkmcnt(0)")
    a(f"""s_mov_b32 s12, s44
s_mov_b32 s13, s45
s_mov_b32 s14, {ACT_BYTES}
s_mov_b32 s15, 0x20000
s_mov_b32 s11, 0x20000
s_cmp_eq_u32 s20, 3
s_cselect_b32 s8, s36, s38
s_cselect_b32 s9, s37, s39
s_mov_b32 s10, {1728*1280+4096}
s_mov_b32 s31, {32*1280}
s_cselect_b32 s10, {640*1280+4096}, s10
s_cselect_b32 s31, {40*1280}, s31
s_cselect_b32 s21, 20, 18
s_cselect_b32 s57, 16, 99
s_mul_i32 s25, s20, {18*32*1280}
s_cselect_b32 s25, 0, s25
s_sub_u32 s8, s8, 4096
s_subb_u32 s9, s9, 0
s_mov_b32 s24, 0
s_mov_b32 s26, 0
s_mov_b32 s27, 0""")
    ldaux = opt.get("ldaux", "")
    def wd(slot):
        return [f"s_add_u32 m0, s33, {slot*4096}"] + [f"buffer_load_dwordx4 v{VD+j}, s[8:11], s25 offen offset:{1024*j} lds" for j in range(4)]
    uid = [0]
    def wadv():
        uid[0] += 1; L = f"Lk2sw{uid[0]}"
        return (f"s_add_u32 s25, s25, s31\ns_add_u32 s26, s26, 1\ns_cmp_ge_u32 s26, s21\ns_cselect_b32 s10, 0, s10\ns_cmp_lg_u32 s26, s57\ns_cbranch_scc1 {L}\n"
                + "".join(f"v_mov_b32 v{VD+j}, v{VD2+j}\n" for j in range(4)) + f"s_mov_b32 s25, 0\ns_mov_b32 s31, {160*1280}\n{L}:")
    def ad(d, tt): return f"buffer_load_dwordx4 {ar(AF(d,tt),4)}, v{VA_+tt}, s[12:15], s24 offen {ldaux}"
    aadv = "s_add_u32 s24, s24, 1024\ns_add_u32 s27, s27, 1\ns_cmp_ge_u32 s27, s21\ns_cselect_b32 s14, 0, s14"
    def rd(b, slot):
        out = []
        for F in range(4):
            out.append(f"ds_read_b64_tr_b16 {ar(WB(b,F),2)}, v{VW+F} offset:{slot*4096}")
            out.append(f"ds_read_b64_tr_b16 {ar(WB(b,F)+2,2)}, v{VW+F} offset:{slot*4096+2048}")
        return out
    def Wst(slot):
        for x in wd(slot): a(x)
        a(wadv())
    def Ast(d):
        for tt in range(NT): a(ad(d, tt))
        a(aadv)
    a(f"""s_add_u32 s16, s44, {GOFF}
s_addc_u32 s17, s45, 0
s_mov_b32 s18, 8192
s_mov_b32 s19, 0x20000
v_lshrrev_b32 v1, 3, v0
s_lshl_b32 s54, s52, 6
v_lshl_add_u32 v1, v1, 2, s54""")
    for i in range(3): a(f"buffer_load_dword v{VG+i}, v1, s[16:19], 0 offen offset:{128*i} {ldaux}")
    Wst(0); Ast(0); Wst(1); Wst(2); Ast(1); Ast(2); Wst(3); Wst(4); Wst(5)
    for i in range(NT * 16): a(f"v_mov_b32 v{A2+i}, 0")
    stamp(a, 1, opt)
    a("s_waitcnt vmcnt(38)")
    for x in rd(0, 0): a(x)
    a("s_mov_b32 s28, s21")
    stamp(a, 2, opt)
    a("Lk2loop:")
    for s in range(6):
        b = s & 1; d = s % 3
        a("s_waitcnt vmcnt(20) lgkmcnt(0)")
        main = [f"v_mfma_f32_16x16x32_bf16 {vr(ac(tt,F),4)}, {ar(WB(b,F),4)}, {ar(AF(d,tt),4)}, {vr(ac(tt,F),4)}" for tt in range(NT) for F in range(4)]
        w = wd(s)
        fill = rd(b ^ 1, (s + 1) % RING) + w + [wadv()] + [ad(d, tt) for tt in range(NT)] + [aadv]
        pos = [0, 0, 1, 1, 2, 2, 4, 4] + [4] + [5, 9, 13, 17] + [18] + [4 * tt + 3 for tt in range(NT)] + [23]
        seq = interleave(main, fill, pos=pos)
        for x in seq: a(x)
        if s in (1, 5):
            a(f"s_sub_u32 s28, s28, {2 if s == 1 else 4}\ns_cmp_eq_u32 s28, 0")
            a("s_cbranch_scc1 Lk2done" if s == 1 else "s_cbranch_scc0 Lk2loop")
    a("Lk2done:")
    stamp(a, 3, opt)
    PSZ = NT * 16 * 272
    a(f"""s_waitcnt vmcnt(0) lgkmcnt(0)
s_barrier
s_mul_i32 s54, s20, {PSZ}
v_mul_u32_u24 v1, 272, v{VC}
v_lshl_add_u32 v1, v{VR_}, 4, v1
v_add_u32 v1, s54, v1""")
    for tt in range(NT):
        for F in range(4): a(f"ds_write_b128 v1, {vr(ac(tt,F),4)} offset:{tt*16*272 + F*64}")
    a(f"""v_lshrrev_b32 v2, 3, v0
v_and_b32 v3, 7, v0
v_mul_u32_u24 v4, 272, v2
v_lshl_add_u32 v4, v3, 5, v4
v_add_u32 v5, {2*PSZ}, v4
s_mov_b32 s16, s40
s_mov_b32 s17, s41
s_mov_b32 s18, {2048*1280}
s_lshl_b32 s54, s23, 7
v_lshl_add_u32 v3, v3, 4, s54""")
    for i in range(3):
        a(f"""v_lshrrev_b32 v6, 4, v2
v_add_u32 v6, s52, v6
v_add_u32 v6, {2*i}, v6
v_and_b32 v7, 15, v2
v_lshlrev_b32 v7, 1, v7
v_and_b32 v8, 1, v6
v_add_u32 v7, v7, v8
v_lshrrev_b32 v6, 1, v6
v_lshl_add_u32 v6, v6, 5, v7
v_mul_u32_u24 v6, 1280, v6
v_add_u32 v{10+i}, v6, v3""")
    a("s_waitcnt lgkmcnt(0)\ns_barrier")
    R = 32
    for i in range(3):
        for p in range(4):
            base = "v4" if p < 2 else "v5"
            off = i * 32 * 272 + (p & 1) * PSZ
            a(f"ds_read_b128 {vr(R+i*32+p*8,4)}, {base} offset:{off}\nds_read_b128 {vr(R+i*32+p*8+4,4)}, {base} offset:{off+16}")
    for i in range(3):
        a(f"s_waitcnt lgkmcnt({min(15, 8*(2-i))})")
        r = R + i * 32
        a(f"v_sub_f32 v13, 1.0, v{VG+i}")
        for e in range(8): a(f"v_add_f32 v{r+e}, v{r+e}, v{r+8+e}")
        for e in range(8): a(f"v_add_f32 v{r+e}, v{r+e}, v{r+16+e}")
        for e in range(8): a(f"v_mul_f32 v{r+24+e}, v{VG+i}, v{r+24+e}")
        for e in range(8): a(f"v_fma_f32 v{r+e}, v{r+e}, v13, v{r+24+e}")
        for e in range(4): a(f"v_cvt_pk_bf16_f32 v{r+8+e}, v{r+2*e}, v{r+2*e+1}")
        a(f"buffer_store_dwordx4 {vr(r+8,4)}, v{10+i}, s[16:19], 0 offen")
    stamp(a, 4, opt)
    a("s_waitcnt vmcnt(0)")
    stamp(a, 5, opt)
    stamp_out(a, 6, opt, 1, "s20")
    a("Lk2end:\ns_endpgm")

HEADER = open("cdna_kernels/%s.s.ref" % NAME).read().split("; Override launch")[0]
def generate(opt):
    global NOPF
    NOPF = opt.get("nopf", 0)
    a = Asm()
    L = {"1": "; @launch kernel=k1_kernel grid=(256,1,1) block=(256,1,1) lds=%d\n" % (3 * SLOT + 2560),
         "2": "; @launch kernel=k2_kernel grid=(224,1,1) block=(256,1,1) lds=%d\n" % max(4 * 6 * 4096, 4 * 6 * 16 * 272),
         "p": "; @launch kernel=p_kernel grid=(80,1,1) block=(256,1,1) lds=0\n",
         "q": "; @launch kernel=q_kernel grid=(256,1,1) block=(256,1,1) lds=0\n",
         "e": "; @launch kernel=e_kernel grid=(1,1,1) block=(64,1,1) lds=0\n"}
    order = opt.get("order", "12")
    hdr = HEADER + "".join(L[c] for c in order)
    a('.amdgcn_target "amdgcn-amd-amdhsa--gfx950"\n.text')
    gen_k1(a, opt)
    gen_k2(a, opt)
    tail = kd("k1_kernel", 512, 256) + kd("k2_kernel", 512, 256)
    if "e" in order:
        a(".globl e_kernel\n.p2align 8\n.type e_kernel,@function\ne_kernel:\ns_endpgm")
        tail += kd("e_kernel", 8, 8, 16)
    if "p" in order:
        a(".globl p_kernel\n.p2align 8\n.type p_kernel,@function\np_kernel:")
        a("s_load_dwordx4 s[4:7], s[0:1], 0\ns_load_dwordx2 s[8:9], s[0:1], 16\ns_load_dwordx4 s[12:15], s[0:1], 32")
        a("s_lshl_b32 s3, s2, 8\nv_add_u32 v1, s3, v0\nv_lshlrev_b32 v1, 7, v1\ns_waitcnt lgkmcnt(0)")
        for n, (b, sz) in enumerate(((4, 2048*1280), (6, 640*3840), (8, 640*1280), (12, 640*3456), (14, 1728*1280))):
            a(f"s_mov_b32 s{16+4*n}, s{b}\ns_mov_b32 s{17+4*n}, s{b+1}\ns_mov_b32 s{18+4*n}, {sz}\ns_mov_b32 s{19+4*n}, 0x20000")
            a(f"buffer_load_dword v{2+n}, v1, s[{16+4*n}:{19+4*n}], 0 offen")
        a("s_waitcnt vmcnt(0)\ns_endpgm")
        tail += kd("p_kernel", 8, 8, 48)
    if "q" in order:
        a(".globl q_kernel\n.p2align 8\n.type q_kernel,@function\nq_kernel:")
        a("s_load_dwordx2 s[4:5], s[0:1], 56\ns_load_dwordx2 s[6:7], s[0:1], 72")
        a("v_lshlrev_b32 v1, 16, v0\ns_waitcnt lgkmcnt(0)")
        for n, (b, sz) in enumerate(((4, 2048*1280), (6, 11 << 20))):
            a(f"s_mov_b32 s{16+4*n}, s{b}\ns_mov_b32 s{17+4*n}, s{b+1}\ns_mov_b32 s{18+4*n}, {sz}\ns_mov_b32 s{19+4*n}, 0x20000")
            a(f"buffer_load_dword v{2+n}, v1, s[{16+4*n}:{19+4*n}], 0 offen")
        a("s_waitcnt vmcnt(0)\ns_endpgm")
        tail += kd("q_kernel", 8, 8, 48)
    return hdr + a.text() + tail

if __name__ == "__main__":
    import json
    opt = json.loads(sys.argv[2]) if len(sys.argv) > 2 else {}
    open(sys.argv[1], "w").write(generate(opt))
```

```python
import sys, struct
sys.path.insert(0, "work")
from asmlib import *

NAME = "gated_mix__sliding_local_dilated__dense_activation_relu__prompt"
KN = NAME + "_kernel"
TSTR = 74 * 1024
GOFF = 0xA00000
FOFF = 0xB00000
WSREC = FOFF + 256 * 128
SLOT = 49152
SPARE = 3 * SLOT
OOB = 0x7ffffff0
MF = "v_mfma_f32_16x16x32_bf16"
def f32(x): return "0x%08x" % struct.unpack("<I", struct.pack("<f", x))[0]

def kd(name, vgpr, accum, sgpr=102):
    return f""".section .rodata,"a"
.p2align 6
.amdhsa_kernel {name}
  .amdhsa_next_free_vgpr {vgpr}
  .amdhsa_next_free_sgpr {sgpr}
  .amdhsa_accum_offset {accum}
  .amdhsa_group_segment_fixed_size 0
  .amdhsa_kernarg_size 80
  .amdhsa_user_sgpr_count 2
  .amdhsa_user_sgpr_kernarg_segment_ptr 1
  .amdhsa_system_sgpr_workgroup_id_x 1
.end_amdhsa_kernel
"""

def stamp(a, idx, opt):
    if opt.get("stamps"): a(f"s_memtime s[{84+2*idx}:{85+2*idx}]")

def stamp_out(a, opt):
    if not opt.get("stamps"): return
    a("s_memrealtime s[60:61]\ns_waitcnt lgkmcnt(0)")
    a(f"s_add_u32 s76, s54, {0xC00000}\ns_addc_u32 s77, s55, 0\ns_mov_b32 s78, 0x10000\ns_mov_b32 s79, 0x20000")
    a("s_lshl_b32 s75, s2, 2\ns_add_u32 s75, s75, s20\ns_lshl_b32 s75, s75, 6")
    a("s_mov_b64 exec, 1\nv_mov_b32 v1, 0")
    for i in range(8):
        a(f"v_mov_b32 v2, s{84+2*i}\nbuffer_store_dword v2, v1, s[76:79], s75 offen offset:{4*i}")
    a("v_mov_b32 v2, s100\nbuffer_store_dword v2, v1, s[76:79], s75 offen offset:32")
    a("v_mov_b32 v2, s60\nbuffer_store_dword v2, v1, s[76:79], s75 offen offset:36")
    a("v_mov_b32 v2, s101\nbuffer_store_dword v2, v1, s[76:79], s75 offen offset:40")

def p2_table():
    tab = [0] * 256
    for half in range(2):
        items = []
        for li in range(5):
            sizes = ([5] * 24 + [4] * 2) if li < 3 else ([5] * 22 + [6] * 3)
            n = len(sizes); odd = [s for s in sizes if s != 5]; seq = [5] * n
            for k, s in enumerate(odd): seq[(2 * k + 1) * n // (2 * len(odd)) + (li & 1)] = s
            T = 0
            for s in seq: items.append((T, s, 5 * half + li)); T += s
            assert T == 128
        items.sort()
        assert len(items) == 128
        for q in range(4):
            xcd = 2 * q + half
            mine = sorted(items[32 * q: 32 * q + 32], key=lambda it: it[1])
            for j, (T0, nt, line) in enumerate(mine):
                mt0, mt1 = T0 >> 3, (T0 + nt - 1) >> 3
                i0, i1 = (16 * (T0 >> 1)) // 57, min((16 * ((T0 + nt - 1) >> 1) + 15) // 57, 17)
                tab[8 * j + xcd] = T0 | nt << 7 | line << 10 | mt0 << 14 | mt1 << 18 | i0 << 22 | i1 << 27
    return tab

ACC = 128
def acc(t, F): return ACC + (t * 8 + F) * 4
def XF(b, t): return b * 48 + t * 4
def WF(b, F): return b * 48 + 16 + F * 4
VL, VR_, VC = 1, 2, 3
VXA, VWA, VDX, VDW, VP = 4, 6, 14, 18, 26
T0_ = 30
BC, BP, B0, MK, OA, ORR = 106, 110, 114, 118, 120, 124
VFP, VFE = 104, 105

class VM:
    def __init__(self): self.ops = []
    def issue(self, tag): self.ops.append(tag)
    def wait(self, *tags):
        idx = [i for i, t in enumerate(self.ops) if t in tags]
        if not idx: return 63
        return min(63, len(self.ops) - 1 - max(idx))

def p1_dma():
    dx = lambda j: f"buffer_load_dwordx4 v{VDX+j}, s[4:7], s24 offen offset:{1024*j} lds"
    dw = lambda j: f"buffer_load_dwordx4 v{VDW+j}, s[8:11], s25 offen offset:{1024*(j&3)} lds"
    H0 = ["s_mov_b32 m0, s27", dx(0), dx(1), dx(2), dx(3), "s_add_u32 m0, s27, s34", dw(0), dw(1)]
    H1 = [dw(2), dw(3), "s_add_u32 m0, m0, 4096", dw(4), dw(5), dw(6), dw(7)]
    adv = ["s_add_u32 s24, s24, s26\ns_add_u32 s25, s25, s31", "s_add_u32 s27, s27, %d\ns_cmp_eq_u32 s27, s32" % SLOT, "s_cselect_b32 s27, s33, s27"]
    return H0, H1, adv

def p1_loop(a, role, shadow, opt):
    sh = []
    for x in shadow:
        if x.startswith("s_cselect"): sh[-1] += "\n" + x
        else: sh.append(x)
    shadow = sh
    Fs = [0, 1, 2, 3, 7] if role == "G" else list(range(8))
    def mf(b):
        out = []
        for t in range(4):
            for F in Fs:
                A, B = ar(WF(b, F), 4), ar(XF(b, t), 4)
                if role == "A" and F >= 5: A, B = B, A
                out.append(f"{MF} {vr(acc(t,F),4)}, {A}, {B}, {vr(acc(t,F),4)}")
        return out
    def reads(b, u):
        xs = [f"ds_read_b128 {ar(XF(b,t),4)}, v{VXA+u} offset:{2048*t}" for t in range(4)]
        ws = []
        for F in Fs:
            if role == "G" and F == 7:
                ws.append(f"ds_read_b128 {ar(WF(b,F),4)}, v{VWA+F} offset:{64*u}")
            else:
                ws.append(f"ds_read_b64_tr_b16 {ar(WF(b,F),2)}, v{VWA+F} offset:{16384*u}")
                ws.append(f"ds_read_b64_tr_b16 {ar(WF(b,F)+2,2)}, v{VWA+F} offset:{16384*u+2048}")
        return xs[:1] + ws + xs[1:]
    H0, H1, adv = p1_dma()
    pro = H0 + H1 + adv + H0 + H1 + adv + H0
    shadow = list(shadow) + [f"v_mov_b32 v{acc(t,F)+i}, 0" for t in range(4) for F in Fs for i in range(4)]
    ndma = sum("buffer_load" in x for x in pro); k = 0; first = opt.get("sh0", 6)
    per = -(-len(shadow) // (ndma - first))
    for x in pro:
        a(x)
        if "buffer_load" in x:
            k += 1
            if k > first:
                for y in shadow[:per]: a(y)
                shadow = shadow[per:]
    for y in shadow: a(y)
    stamp(a, 1, opt)
    a("s_waitcnt vmcnt(18)\ns_barrier")
    for x in reads(0, 0): a(x)
    if role == "G": snapshot_publish(a)
    a("s_mov_b32 s28, 10\ns_mov_b32 s29, %d\ns_mov_b32 s35, 0\ns_mov_b32 s69, s29\ns_mov_b32 s68, %d" % (SLOT, (-2 * SLOT) & 0xffffffff))
    a("s_waitcnt lgkmcnt(0)")
    a(f"Lp1loop{role}:")
    n = len(mf(0)); sc = lambda p: p * n // 32
    rd = reads(1, 1)
    upd = [f"v_add_u32 v{VXA+i}, s29, v{VXA+i}" for i in range(2)] + [(f"v_add_u32 v{VWA+F}, 128, v{VWA+F}" if role == "G" and F == 7 else f"v_add_u32 v{VWA+F}, s29, v{VWA+F}") for F in Fs]
    sw = [f"s_cmp_eq_u32 s28, 3\ns_cbranch_scc1 Lsw{role}\nLswb{role}:"]
    fill = rd + upd + H1 + adv + sw
    pos = list(range(len(rd))) + [len(rd) + i for i in range(len(upd))] + [sc(p) for p in opt.get("posH1", [2, 7, 10, 12, 17, 22, 26])] + [sc(p) for p in (27, 28, 29, 30)]
    for x in interleave(mf(0), fill, pos=pos): a(x)
    a("s_waitcnt vmcnt(12) lgkmcnt(0)\ns_barrier")
    rd = reads(0, 0)
    nxt = ["s_add_u32 s35, s35, 1\ns_cmp_eq_u32 s35, 2", "s_cselect_b32 s29, s68, s69", "s_cmp_eq_u32 s35, 3\ns_cselect_b32 s35, 0, s35", "s_sub_u32 s28, s28, 1\ns_cmp_lg_u32 s28, 0"]
    fill = rd + H0 + nxt
    pos = list(range(len(rd))) + [sc(p) for p in opt.get("posH0", [0, 2, 7, 12, 17, 20, 22, 26])] + [sc(p) for p in (27, 28, 29, 30)]
    for x in interleave(mf(1), fill, pos=pos): a(x)
    a("s_waitcnt lgkmcnt(0)")
    a(f"s_cbranch_scc1 Lp1loop{role}")
    post = H1 + [f"s_add_u32 m0, s33, {SPARE}", "s_add_u32 s24, s24, s26"] + [f"buffer_load_dwordx4 v{VDX+j}, s[4:7], s24 offen offset:{1024*j} lds" for j in range(4)]
    post += [f"buffer_load_ubyte v{VFE}, v{VFE}, s[72:75], 0 offen sc1"]
    return post

def switch_block(a, role):
    a(f"Lsw{role}:")
    a(f"""s_sub_u32 s4, s46, 4096
s_subb_u32 s5, s47, 0
s_mov_b32 s6, {1728*1280+4096}
s_mov_b32 s8, s4
s_mov_b32 s9, s5
s_mov_b32 s10, s6
s_mul_i32 s24, s62, {32*1280}
s_add_u32 s25, s24, {32*1280}
s_mov_b32 s26, {96*1280}
s_mov_b32 s31, s26""")
    for j in range(4):
        a(f"v_mov_b32 v{VDX+j}, v{VP+j}\nv_mov_b32 v{VDW+j}, v{VP+j}\nv_add_u32 v{VDW+4+j}, {32*1280}, v{VP+j}")
    a(f"s_branch Lswb{role}")

def snapshot_issue(a):
    a("s_cmp_lg_u32 s70, 6\ns_cbranch_scc1 Lsn1\ns_cmp_lg_u32 s20, 1\ns_cbranch_scc1 Lsn1")
    a(f"v_lshlrev_b32 v102, 9, v{VL}\nv_add_u32 v102, {FOFF}, v102")
    for j in range(4): a(f"buffer_load_dword v{32+j}, v102, s[12:15], 0 offen offset:{128*j} sc1")
    a("Lsn1:")
def snapshot_publish(a):
    a("s_cmp_lg_u32 s70, 6\ns_cbranch_scc1 Lsn2\ns_cmp_lg_u32 s20, 1\ns_cbranch_scc1 Lsn2")
    a(f"""v_and_b32 v32, 1, v32
v_and_b32 v33, 1, v33
v_and_b32 v34, 1, v34
v_and_b32 v35, 1, v35
v_lshl_or_b32 v32, v33, 8, v32
v_lshl_or_b32 v34, v35, 8, v34
v_lshl_or_b32 v32, v34, 16, v32
v_or_b32 v32, 0x80808080, v32
v_lshlrev_b32 v102, 2, v{VL}
buffer_store_dword v32, v102, s[72:75], 0 offen sc1
Lsn2:""")

def common_shadow():
    t = 96
    L = f"""v_lshrrev_b32 v{t}, 3, v{VL}
v_and_b32 v{t+1}, 7, v{VL}
v_bfe_u32 v{t+2}, v{VL}, 4, 2
v_lshlrev_b32 v{t+2}, 1, v{t+2}
v_xor_b32 v{t+1}, v{t+1}, v{t+2}
s_bfe_u32 s57, s56, 0x4000a
s_lshl_b32 s57, s57, 7
s_add_u32 s57, s57, 4096
v_lshl_add_u32 v{t+1}, v{t+1}, 4, s57
v_mul_u32_u24 v{t}, 1280, v{t}
v_add_u32 v{VP}, v{t}, v{t+1}""".split("\n")
    L += [f"v_add_u32 v{VP+j}, {8*j*1280-1024*j}, v{VP}" for j in range(1, 4)]
    L += f"""s_mul_i32 s62, s20, 14
s_cmp_eq_u32 s20, 3
s_cselect_b32 s57, 1, 0
s_sub_u32 s62, s62, s57
s_lshr_b32 s57, s62, 3
s_add_u32 s58, s62, 13
s_lshr_b32 s59, s20, 1
s_sub_u32 s58, s58, s59
s_lshr_b32 s58, s58, 3
v_and_b32 v{t}, 7, v{VL}
v_add_u32 v{t}, s57, v{t}
v_min_u32 v{t}, s58, v{t}
v_cmp_gt_u32 vcc, 32, v{VL}
s_bfe_u32 s57, s56, 0x4000e
s_bfe_u32 s58, s56, 0x40012
v_cndmask_b32 v{t}, 6, v{t}, vcc
v_bfe_u32 v{t+1}, v{VL}, 3, 1
v_add_u32 v{t+1}, s57, v{t+1}
v_min_u32 v{t+1}, s58, v{t+1}
v_mad_u32_u24 v{t}, v{t+1}, 7, v{t}
s_bfe_u32 s57, s56, 0x50016
s_lshr_b32 s58, s56, 27
v_bfe_u32 v{t+1}, v{VL}, 1, 3
v_add_u32 v{t+1}, s57, v{t+1}
v_min_u32 v{t+1}, s58, v{t+1}
s_lshl_b32 s57, s20, 1
s_add_u32 s57, s57, 112
v_lshl_add_u32 v{t+1}, v{t+1}, 3, s57
v_and_b32 v{t+2}, 1, v{VL}
v_add_u32 v{t+1}, v{t+1}, v{t+2}
v_cmp_eq_u32 vcc, 1, v{VR_}
v_mov_b32 v{t+2}, s70
v_cndmask_b32 v{t}, v{t}, v{t+1}, vcc
v_cmp_eq_u32 vcc, 3, v{VR_}
s_nop 1
v_cndmask_b32 v{VFE}, v{t}, v{t+2}, vcc
v_lshlrev_b32 v{VFP}, 7, v{VFE}
v_add_u32 v{VFP}, {FOFF}, v{VFP}""".split("\n")
    return L

def att_shadow():
    t = 96
    NEG = f32(-1.0e30)
    L = []
    L += f"""s_mul_i32 s57, s65, 80
v_add_u32 v{t}, s57, v{T0_}
v_and_b32 v{t+3}, 3, v{VL}
v_lshl_add_u32 v{t+1}, v{t+3}, 3, v{t}
v_and_b32 v{t+2}, 1, v{VL}
v_mad_u32_u24 v{t}, v{t+2}, 40, v{t}
v_bfe_u32 v{t+2}, v{VL}, 1, 1
v_mul_u32_u24 v{t+2}, 160, v{t+2}
v_add_u32 v{t+2}, v{t+2}, v{t}""".split("\n")
    for F, (src, off) in enumerate([(1, 0), (1, 40), (1, 160), (1, 200), (2, 32), (1, 320), (1, 360), (0, 352)]):
        L += [f"v_add_u32 v{VWA+F}, {off}, v{t+src}", f"v_xor_b32 v{VWA+F}, v{VWA+F}, v{T0_+1}"]
    L += f"v_mov_b32 v{t}, {NEG}\ns_cmp_eq_u32 s22, 0\ns_cselect_b32 s57, 7, 0".split("\n")
    for j in range(4):
        L += f"""v_lshl_add_u32 v{t+1}, v{VR_}, 2, {j}
v_sub_u32 v{t+2}, v{VC}, v{t+1}
v_cmp_gt_u32 vcc, 8, v{t+2}
v_cmp_gt_i32 s[66:67], -8, v{t+2}
v_cmp_le_u32 s[58:59], s57, v{t+1}
v_cndmask_b32 v{BC+j}, v{t}, 0, vcc
v_cmp_le_i32 vcc, 0, v{t+2}
v_cndmask_b32 v{BP+j}, v{t}, 0, s[66:67]
v_cndmask_b32 v{B0+j}, v{t}, v{BC+j}, s[58:59]
v_cndmask_b32 v{t+3+(j&1)}, 0, -1, vcc""".split("\n")
        if j & 1: L += [f"v_lshlrev_b32 v{t+4}, 16, v{t+4}", f"v_and_b32 v{t+3}, 0xffff, v{t+3}", f"v_or_b32 v{MK+(j>>1)}, v{t+3}, v{t+4}"]
    L += f"""s_mul_i32 s57, s22, 57
s_sub_u32 s57, s57, 7
s_mov_b32 s63, {TSTR}
v_mov_b32 v{t}, {OOB}
v_mov_b32 v{t+4}, 0x400""".split("\n")
    for tt in range(4):
        L += f"""v_add_u32 v{t+1}, {16*tt}, v{VC}
v_add_u32 v{t+2}, s57, v{t+1}
v_cmp_lt_u32 vcc, 6, v{t+1}
v_cmp_gt_i32 s[66:67], v{t+4}, v{t+2}
v_ashrrev_i32 v{t+1}, 4, v{t+2}
s_and_b64 vcc, vcc, s[66:67]
v_lshl_add_u32 v{t+1}, v{t+1}, 1, s64
v_mul_lo_u32 v{t+1}, v{t+1}, s63
v_and_b32 v{t+2}, 15, v{t+2}
v_lshl_add_u32 v{t+1}, v{t+2}, 4, v{t+1}
v_lshl_add_u32 v{t+2}, v{VR_}, 8, v{t+1}
v_cndmask_b32 v{OA+tt}, v{t}, v{t+2}, vcc
v_lshl_add_u32 v{t+2}, v{VR_}, 3, v{t+1}
s_and_b32 vcc_hi, vcc_hi, 0
v_cndmask_b32 v{ORR+tt}, v{t}, v{t+2}, vcc""".split("\n")
    return L

def ffn_shadow(role):
    t = 96
    L = f"""s_lshl_b32 s57, s65, 8
v_add_u32 v{t}, s57, v{T0_}
v_and_b32 v{t+1}, 3, v{VL}
v_lshl_add_u32 v{t}, v{t+1}, 3, v{t}
v_or_b32 v{VWA}, v{t}, v{T0_+1}""".split("\n")
    L += [f"v_xor_b32 v{VWA+F}, {32*F}, v{VWA}" for F in range(1, 4 if role == "G" else 8)]
    if role == "G": L += [f"s_add_u32 s57, s33, {SPARE}", f"v_lshl_add_u32 v{VWA+7}, v{VR_}, 4, s57"]
    return L

cvt = lambda d, s: f"v_cvt_pk_bf16_f32 v{d}, v{s}, v{s+1}\nv_cvt_pk_bf16_f32 v{d+1}, v{s+2}, v{s+3}"

def ffn_epilogue(a, role, post, opt):
    st = opt.get("staux", "sc1")
    a(f"""s_lshl_b32 s57, s22, 3
s_add_u32 s57, s57, s64
s_lshl_b32 s59, s57, 6
s_mul_i32 s57, s57, {TSTR}
s_lshl_b32 s58, s23, 1
s_add_u32 s58, s58, s65
s_lshl_b32 s58, s58, 12
s_add_u32 s57, s57, s58
v_lshlrev_b32 v30, 4, v{VL}""")
    for x in post: a(x)
    k = 0
    for tt in range(4):
        for u in range(2 if role == "G" else 4):
            d = 32 + 4 * (k % 4); k += 1
            for h in range(2): a(cvt(d + 2 * h, acc(tt, 2 * u + h)))
            for i in range(4): a(f"v_pk_max_i16 v{d+i}, v{d+i}, 0")
            a(f"buffer_store_dwordx4 {vr(d,4)}, v30, s[12:15], s57 offen offset:{1024*u} {st}")
        if tt < 3: a(f"s_add_u32 s57, s57, {2*TSTR}")
    if role == "G":
        a(f"""s_add_u32 s59, s59, {GOFF}
v_lshlrev_b32 v30, 2, v{VL}
v_cmp_gt_u32 vcc, 16, v{VL}
v_mov_b32 v31, {OOB}
v_cndmask_b32 v30, v31, v30, vcc""")
        for tt in range(4):
            z = acc(tt, 7)
            a(f"v_mul_f32 v{z}, {f32(-1.4426950408889634)}, v{z}\nv_exp_f32 v{z}, v{z}\nv_add_f32 v{z}, 1.0, v{z}\nv_rcp_f32 v{z}, v{z}")
            a(f"buffer_store_dword v{z}, v30, s[12:15], s59 offen offset:{128*tt} {st}")

def att_epilogue(a, post, opt):
    st = opt.get("staux", "sc1")
    CS = f32(20 ** -0.5 * 1.4426950408889634)
    KA, KB, QA, QB = 32, 48, 64, 80
    VA, VB, VRR = 96, 4, 12
    ONE = 30
    for x in post: a(x)
    a(f"""s_mov_b32 s58, {CS}
s_mov_b64 s[60:61], 0xffff
s_mov_b32 s66, 0xffff0000
s_mov_b32 s67, 0
s_mov_b32 vcc_lo, 0xff00ff00
s_mov_b32 vcc_hi, 0xff00ff00
v_mov_b32 v{ONE}, 0x3f803f80
s_lshl_b32 s63, s23, 1
s_add_u32 s63, s63, s65
s_add_u32 s57, s63, 54
s_lshl_b32 s57, s57, 10
s_lshr_b32 s59, s63, 2
s_add_u32 s59, s59, 70
s_lshl_b32 s59, s59, 10
s_and_b32 s63, s63, 3
s_lshl_b32 s63, s63, 8
s_add_u32 s59, s59, s63""")
    def smf(tt):
        o = []
        for h, (Kx, Qx) in enumerate(((KA, QA), (KB, QB))):
            o.append(f"{MF} {vr(acc(tt,2*h),4)}, {vr(Kx+4*tt,4)}, {vr(Qx+4*tt,4)}, {vr(B0 if tt == 0 else BC,4)}")
            if tt: o.append(f"{MF} {vr(acc(tt,2*h+1),4)}, {vr(Kx+4*(tt-1),4)}, {vr(Qx+4*tt,4)}, {vr(BP,4)}")
        return o
    for tt in range(4):
        a(cvt(KA + 4 * tt + 2, acc(tt, 4)))
        a(cvt(QA + 4 * tt, acc(tt, 0)))
        a(f"v_mov_b32 v{QB+4*tt+2}, v{KA+4*tt+2}\nv_mov_b32 v{QB+4*tt+3}, v{KA+4*tt+3}")
        a(cvt(QB + 4 * tt, acc(tt, 1))); a(cvt(KA + 4 * tt, acc(tt, 2)))
        a(f"v_permlane32_swap_b32 v{QB+4*tt+2}, v{KA+4*tt+2}\nv_permlane32_swap_b32 v{QB+4*tt+3}, v{KA+4*tt+3}")
        a(cvt(KB + 4 * tt, acc(tt, 3)))
        for i in (2, 3):
            a(f"""v_mov_b32 v{KB+4*tt+i}, v{KA+4*tt+i}
v_cndmask_b32 v{QA+4*tt+i}, 0, v{QB+4*tt+i}, s[60:61]
v_cndmask_b32 v{QB+4*tt+i}, 0, v{QB+4*tt+i}, s[66:67]""")
        vq = (cvt(VA + 2 * tt, acc(tt, 5)) + "\n" + cvt(VB + 2 * tt, acc(tt, 6)) + "\n" + cvt(VRR + 2 * tt, acc(tt, 7))).split("\n")
        vq += [f"v_cndmask_b32 v{VRR+2*tt+i}, v{VRR+2*tt+i}, v{ONE}, vcc" for i in (0, 1)]
        a(vq[0]); a(vq[1])
        for x in interleave(smf(tt), vq[2:], per=2): a(x)
    M = 64
    S = lambda tt, h: acc(tt, 2 * h)
    for tt in range(4):
        for h in range(2):
            s = S(tt, h); m = M + 4 * tt + h
            if tt:
                for j in range(4): a(f"v_max_f32 v{s+j}, v{s+j}, v{s+4+j}")
            a(f"v_max3_f32 v{m}, v{s}, v{s+1}, v{s+2}\nv_max_f32 v{m}, v{m}, v{s+3}")
    for tt in range(4): a(f"v_permlane32_swap_b32 v{M+4*tt}, v{M+4*tt+1}")
    for tt in range(4): a(f"v_max_f32 v{M+4*tt}, v{M+4*tt}, v{M+4*tt+1}")
    for tt in range(4): a(f"v_mov_b32 v{M+4*tt+1}, v{M+4*tt}")
    for tt in range(4): a(f"v_permlane16_swap_b32 v{M+4*tt}, v{M+4*tt+1}")
    for tt in range(4): a(f"v_max_f32 v{M+4*tt}, v{M+4*tt}, v{M+4*tt+1}")
    for tt in range(4): a(f"v_mul_f32 v{M+4*tt}, s58, v{M+4*tt}")
    for tt in range(4): a(f"v_mov_b32 v{M+4*tt+1}, v{M+4*tt}")
    for tt in range(4): a(f"v_permlane32_swap_b32 v{M+4*tt}, v{M+4*tt+1}")
    PP = lambda tt, h: acc(tt, 4 + h)
    pend = []
    for tt in range(4):
        body = []
        for h in range(2):
            s = S(tt, h); m = M + 4 * tt + h
            body += [f"v_fma_f32 v{s+j}, v{s+j}, s58, -v{m}" for j in range(4)]
            body += [f"v_exp_f32 v{s+j}, v{s+j}" for j in range(4)]
        for h in range(2):
            s = S(tt, h); p = PP(tt, h)
            body += cvt(p, s).split("\n")
            if tt == 0: body += [f"v_mov_b32 v{p+2}, 0", f"v_mov_b32 v{p+3}, 0"]
            else: body += [f"v_and_b32 v{p+2}, v{MK}, v{p}", f"v_and_b32 v{p+3}, v{MK+1}, v{p+1}", f"v_xor_b32 v{p}, v{p}, v{p+2}", f"v_xor_b32 v{p+1}, v{p+1}, v{p+3}"]
        for x in (interleave(body, pend, pos=[1 + 3 * i for i in range(len(pend))]) if pend else body): a(x)
        vo = 2 * max(tt - 1, 0)
        pend = [f"{MF} {vr(acc(tt,2),4)}, {vr(VRR+vo,4)}, {vr(PP(tt,0),4)}, 0", f"{MF} {vr(acc(tt,3),4)}, {vr(VRR+vo,4)}, {vr(PP(tt,1),4)}, 0",
                f"{MF} {vr(acc(tt,0),4)}, {vr(VA+vo,4)}, {vr(PP(tt,0),4)}, 0", f"{MF} {vr(acc(tt,1),4)}, {vr(VB+vo,4)}, {vr(PP(tt,1),4)}, 0"]
    for x in pend: a(x)
    Fm = 32
    for grp in ((0, 1, 2), (3,)):
        for tt in grp: a(f"v_mov_b32 v{Fm+4*tt+2}, v{acc(tt,2)}\nv_mov_b32 v{Fm+4*tt}, v{acc(tt,3)}")
        for tt in grp: a(f"v_permlane32_swap_b32 v{Fm+4*tt+2}, v{Fm+4*tt}")
        for tt in grp: a(f"v_rcp_f32 v{Fm+4*tt}, v{Fm+4*tt}")
        for tt in grp: a(f"v_mov_b32 v{Fm+4*tt+1}, v{Fm+4*tt}")
        for tt in grp: a(f"v_permlane32_swap_b32 v{Fm+4*tt}, v{Fm+4*tt+1}")
        for tt in grp:
            fA, fB, fR = Fm + 4 * tt, Fm + 4 * tt + 1, Fm + 4 * tt + 3
            oA, oB, rA, rB = acc(tt, 0), acc(tt, 1), acc(tt, 2), acc(tt, 3)
            d = acc(tt, 6)
            for j in range(4): a(f"v_mul_f32 v{oA+j}, v{fA}, v{oA+j}\nv_mul_f32 v{oB+j}, v{fB}, v{oB+j}")
            a(cvt(d, oA)); a(cvt(d + 2, oB))
            a(f"buffer_store_dwordx4 {vr(d,4)}, v{OA+tt}, s[12:15], s57 offen {st}")
            a(f"v_cndmask_b32 v{fR}, v{fB}, v{fA}, s[60:61]")
            for j in range(4): a(f"v_cndmask_b32 v{rA+j}, v{rB+j}, v{rA+j}, s[60:61]")
            for j in range(4): a(f"v_mul_f32 v{rA+j}, v{fR}, v{rA+j}")
            a(cvt(d + 4, rA))
            a(f"buffer_store_dwordx2 {vr(d+4,2)}, v{ORR+tt}, s[12:15], s59 offen {st}")

def spin(a, name, mask_lo, mask_hi, tmp):
    a(f"""s_mov_b32 exec_lo, {mask_lo}
s_mov_b32 exec_hi, {mask_hi}
s_mov_b32 s57, 0x20000
L{name}:
buffer_load_dword v{tmp}, v{VFP}, s[12:15], 0 offen sc1
s_sub_u32 s57, s57, 1
s_waitcnt vmcnt(0)
v_and_b32 v{tmp}, 1, v{tmp}
v_cmp_ne_u32 vcc, v{tmp}, v{VFE}
s_cmp_eq_u32 s57, 0
s_cbranch_scc1 L{name}x
s_cbranch_vccnz L{name}
L{name}x:
s_mov_b64 exec, -1""")

def phase2(a, opt):
    NT = 6; DA = opt.get("DA", 4); NS = 19
    ld = opt.get("ldaux", "sc1")
    aH = lambda t, F: 64 + (t * 4 + F) * 4
    aO = lambda t, F: 160 + (t * 4 + F) * 4
    AF = lambda d, t: (d * NT + t) * 4
    WB = lambda b, F: DA * NT * 4 + (b * 4 + F) * 4
    VT, VA_, VP2, VG, VOM, TMP = 4, 20, 30, 34, 40, 46
    PF = 62
    t = 48
    CH = [(0, 49152), (1, 49152), (1, 53248), (0, 98304), (1, 98304), (1, 102400), (0, 0), (1, 0), (1, 4096), (0, SPARE)]
    a("Lp2:")
    a(f"""s_add_u32 s34, s34, s33
v_lshrrev_b32 v{t}, 2, v{VL}
v_lshlrev_b32 v{t+1}, 7, v{t}
v_and_b32 v{t+2}, 3, v{VL}
v_lshl_add_u32 v{t+1}, v{t+2}, 3, v{t+1}
v_bfe_u32 v{t+2}, v{t}, 1, 2
v_lshl_add_u32 v{t+1}, v{t+2}, 5, v{t+1}""")
    for F in range(4):
        a(f"v_xor_b32 v{t+2}, {32*F}, v{t+1}\nv_add_u32 v{VT+F}, s33, v{t+2}\nv_add_u32 v{VT+8+F}, s34, v{t+2}")
        a(f"v_add_u32 v{VT+4+F}, 98304, v{VT+F}\nv_add_u32 v{VT+12+F}, 98304, v{VT+8+F}")
    a(f"s_and_b32 s21, s56, 127\ns_bfe_u32 s22, s56, 0x30007\ns_bfe_u32 s23, s56, 0x4000a\nv_lshlrev_b32 v{t}, 4, v{VL}\ns_mul_i32 s57, s21, {TSTR}")
    for tt in range(NT):
        if tt >= 4: a(f"s_cmp_gt_u32 s22, {tt}\ns_cselect_b32 s57, s57, {OOB-1024}")
        a(f"v_add_u32 v{VA_+tt}, s57, v{t}")
        if tt < NT - 1: a(f"s_add_u32 s57, s57, {TSTR}")
    a(f"""v_lshrrev_b32 v{t}, 5, v{VL}
v_mul_u32_u24 v{t}, {36*1280}, v{t}""")
    for j in range(4):
        a(f"v_add_u32 v{VP2+j}, v{t}, v{VP+j}\nv_add_u32 v{VP2+j}, {(80*(j&1) + 16 + 20*(j>>1) - 8*j)*1280}, v{VP2+j}")
    a(f"""s_sub_u32 s76, s40, 4096
s_subb_u32 s77, s41, 0
s_mov_b32 s78, {640*1280+4096}
s_mov_b32 s79, 0x20000
s_mov_b32 s80, s12
s_mov_b32 s81, s13
s_mov_b32 s83, 0x20000
s_cmp_ge_u32 s20, 2
s_cselect_b32 s82, 0, s14
s_cselect_b32 s6, 0, s6
s_add_u32 s25, s24, {32*1280}
s_lshl_b32 s24, s62, 10
s_mul_i32 s26, s20, {160*1280}
s_lshl_b32 s27, s20, 12
s_add_u32 s27, s27, {54*1024}
s_lshl_b32 s28, s20, 10
s_add_u32 s28, s28, {70*1024}""")
    stamp(a, 3, opt)
    a("s_waitcnt vmcnt(0)")
    a(f"""s_mov_b32 s57, 0x20000
Lsnw:
v_and_b32 v{TMP}, 0x80, v{VFE}
v_cmp_eq_u32 vcc, 0, v{TMP}
s_sub_u32 s57, s57, 1
s_cmp_eq_u32 s57, 0
s_cbranch_scc1 Lsnx
s_cbranch_vccz Lsnx
v_subrev_u32 v{TMP}, {FOFF}, v{VFP}
v_lshrrev_b32 v{TMP}, 7, v{TMP}
buffer_load_ubyte v{VFE}, v{TMP}, s[72:75], 0 offen sc1
s_waitcnt vmcnt(0)
s_branch Lsnw
Lsnx:
v_and_b32 v{VFE}, 1, v{VFE}
v_xor_b32 v{VFE}, 1, v{VFE}
s_barrier
s_cmp_lg_u32 s20, 0
s_cbranch_scc1 Lnosig
s_mov_b32 exec_lo, 0
s_mov_b32 exec_hi, 0x10000
buffer_store_dword v{VFE}, v{VFP}, s[12:15], 0 offen sc1
s_mov_b64 exec, -1
Lnosig:
v_mov_b32 v60, v{VFP}
v_mov_b32 v61, v{VFE}""")
    global VFP_, VFE_
    stamp(a, 4, opt)
    def rd(j):
        fam, off = CH[j % 10]; b = j & 1
        base = VT + 8 * fam + (4 if off >= 98304 else 0); off -= 98304 if off >= 98304 else 0
        o = []
        for F in range(4):
            o.append(f"ds_read_b64_tr_b16 {ar(WB(b,F),2)}, v{base+F} offset:{off}")
            o.append(f"ds_read_b64_tr_b16 {ar(WB(b,F)+2,2)}, v{base+F} offset:{off+2048}")
        return o
    def wd(j):
        fam, off = CH[j % 10]
        o = [f"s_add_u32 m0, {'s34' if fam else 's33'}, {off}"]
        for i in range(4):
            if j <= 13: srd, v, so = ("s[4:7]" if j == 13 else "s[8:11]"), VP + i, "s25"
            elif j <= 17: srd, v, so = "s[76:79]", VP + i, ("s26" if i < 2 else "s29")
            else: srd, v, so = "s[76:79]", VP2 + i, "s30"
            o.append(f"buffer_load_dwordx4 v{v}, {srd}, {so} offen offset:{1024*i} lds")
        if j < 13: o.append(f"s_add_u32 s25, s25, {32*1280}")
        elif j == 13: o.append(f"s_mov_b32 s30, s26\ns_add_u32 s29, s26, {4*1280}")
        elif j < 17: o.append(f"s_add_u32 s26, s26, {40*1280}\ns_add_u32 s29, s29, {40*1280}")
        return o
    def ad(j, tt):
        srd = "s[80:83]" if j == 13 else "s[12:15]"
        so, off = ("s24", 1024 * (j & 3)) if j <= 13 else (("s27", 1024 * (j - 14)) if j <= 17 else ("s28", 0))
        return f"buffer_load_dwordx4 {ar(AF(j % DA, tt),4)}, v{VA_+tt}, {srd}, {so} offen offset:{off} {ld}"
    vm = VM()
    for x in rd(0): a(x)
    sp = Asm(); spin(sp, "ph", 0xffff, 0, TMP)
    for x in sp.L: a(x.replace(f"v{VFP}", "v60").replace(f"v{VFE}", "v61"))
    stamp(a, 5, opt)
    for j in range(DA):
        for tt in range(NT): a(ad(j, tt)); vm.issue(("a", j))
        if j & 3 == 3: a("s_add_u32 s24, s24, 4096")
    JP = 14 - DA
    for j in range(NS):
        b = j & 1; d = j % DA
        need = [("a", j), ("w", j + 1)] + ([("p",)] if j == JP else []) + ([("g",)] if j == 15 else [])
        a(f"s_waitcnt vmcnt({vm.wait(*need)}) lgkmcnt(0)")
        if j == JP:
            a(f"""v_and_b32 v{PF}, 1, v{PF}
v_cmp_ne_u32 vcc, v{PF}, v61
s_and_b32 vcc_lo, vcc_lo, 0xffff0000
s_and_b32 vcc_hi, vcc_hi, 0xffff
s_cbranch_vccz Lpok""")
            sp = Asm(); spin(sp, "po", 0xffff0000, 0xffff, PF)
            for x in sp.L: a(x.replace(f"v{VFP}", "v60").replace(f"v{VFE}", "v61"))
            a("Lpok:")
        ac = aH if j <= 13 else aO
        main = [f"{MF} {vr(ac(tt,F),4)}, {ar(WB(b,F),4)}, {ar(AF(d,tt),4)}, {'0' if j in (0, 14) else vr(ac(tt,F),4)}" for tt in range(NT) for F in range(4)]
        fill, pos = [], []
        if j + 1 < NS: fill += rd(j + 1); pos += [0, 0, 1, 1, 2, 2, 4, 4]
        if j + 10 < NS:
            w = wd(j + 10); fill += w; pos += [5, 6, 9, 13, 17, 18][:len(w)]
        if j == JP - 2:
            fill.append(f"s_mov_b32 exec_lo, 0xffff0000\ns_mov_b32 exec_hi, 0xffff\nbuffer_load_dword v{PF}, v60, s[12:15], 0 offen sc1\ns_mov_b64 exec, -1"); pos.append(21)
        if j == JP:
            fill.append(f"s_lshl_b32 s57, s21, 6\ns_add_u32 s57, s57, {GOFF}\nv_lshlrev_b32 v{TMP}, 2, v{VC}"); pos.append(5)
            for tt in range(NT): fill.append(f"buffer_load_dword v{VG+tt}, v{TMP}, s[12:15], s57 offen offset:{64*tt} {ld}"); pos.append(6 + 2 * tt + (tt > 0))
        if j + DA < NS:
            for tt in range(NT): fill.append(ad(j + DA, tt)); pos.append(4 * tt + 3)
            if (j + DA) & 3 == 3 and j + DA < 13: fill.append("s_add_u32 s24, s24, 4096"); pos.append(23)
        if j == 15:
            for tt in range(NT): fill.append(f"v_sub_f32 v{VOM+tt}, 1.0, v{VG+tt}"); pos.append(5 + tt)
        if j >= 15:
            lo, hi = {15: (0, 12), 16: (12, 40), 17: (40, 68), 18: (68, 96)}[j]
            for k, e in enumerate(range(lo, hi)):
                fill.append(f"v_mul_f32 v{64+e}, v{VOM+e//16}, v{64+e}"); pos.append((11 + k if j == 15 else 5 + (k * 18) // 28))
        seq = interleave(main, fill, pos=pos)
        for x in seq:
            a(x)
            for l in x.split("\n"):
                if l.startswith("buffer_load"):
                    if " lds" in l: vm.issue(("w", j + 10))
                    elif f"v{PF}," in l: vm.issue(("p",))
                    elif "dwordx4" in l: vm.issue(("a", j + DA))
                    else: vm.issue(("g",))
    stamp(a, 6, opt)
    W_, R_, O_ = 4, 12, 20
    a(f"""v_xor_b32 v{t}, v{VR_}, v{VC}
v_lshlrev_b32 v{t}, 4, v{t}
v_lshl_add_u32 v{t}, v{VC}, 8, v{t}
v_add_u32 v{W_}, s34, v{t}""")
    for F in range(1, 4): a(f"v_xor_b32 v{W_+F}, {64*F}, v{W_}")
    for F in range(4): a(f"v_add_u32 v{W_+4+F}, 98304, v{W_+F}")
    for tt in range(NT):
        for F in range(4):
            h, o = aH(tt, F), aO(tt, F)
            for e in range(4): a(f"v_fmac_f32 v{h+e}, v{VG+tt}, v{o+e}")
            a(f"ds_write_b128 v{W_+F+(4 if tt >= 4 else 0)}, {vr(h,4)} offset:{49152*((tt>>1)&1 if tt < 4 else 0) + 4096*(tt&1)}")
    a(f"""v_bfe_u32 v{t}, v0, 3, 4
v_and_b32 v{t+1}, 7, v0
v_lshlrev_b32 v{t+2}, 1, v{t+1}
v_xor_b32 v{t+2}, v{t+2}, v{t}
v_lshlrev_b32 v{t+2}, 4, v{t+2}
v_lshl_add_u32 v{t+2}, v{t}, 8, v{t+2}
s_lshr_b32 s57, s20, 1
s_lshl_b32 s58, s57, 12
s_add_u32 s58, s58, 16384
v_add_u32 v{R_}, s58, v{t+2}
v_xor_b32 v{R_+1}, 16, v{R_}
v_add_u32 v{R_+2}, 49152, v{R_}
v_add_u32 v{R_+3}, 49152, v{R_+1}
v_add_u32 v{R_+4}, 98304, v{R_}
v_add_u32 v{R_+5}, 98304, v{R_+1}
s_mov_b32 s4, s50
s_mov_b32 s5, s51
s_mov_b32 s6, {2048*1280}
s_lshl_b32 s23, s23, 7
v_lshl_add_u32 v{t+1}, v{t+1}, 4, s23
v_mul_u32_u24 v{t}, 2560, v{t}
v_add_u32 v{t}, v{t}, v{t+1}""")
    for i in range(3):
        a(f"""s_add_u32 s58, s57, {2*i}
s_cmp_lt_u32 s58, s22
s_cselect_b32 s63, 0, {OOB-0x400000}
s_add_u32 s58, s58, s21""")
        a(f"""s_and_b32 s59, s58, 1
s_lshr_b32 s58, s58, 1
s_lshl_b32 s58, s58, 5
s_add_u32 s58, s58, s59
s_mul_i32 s58, s58, 1280
s_add_u32 s58, s58, s63
v_add_u32 v{O_+i}, s58, v{t}""")
    a("s_waitcnt lgkmcnt(0)\ns_barrier")
    R = 64
    for i in range(3):
        for p in range(4):
            a(f"ds_read_b128 {vr(R+i*32+p*8,4)}, v{R_+2*i} offset:{8192*p}\nds_read_b128 {vr(R+i*32+p*8+4,4)}, v{R_+2*i+1} offset:{8192*p}")
    for i in range(3):
        a(f"s_waitcnt lgkmcnt({min(15, 8*(2-i))})")
        r = R + i * 32
        for e in range(0, 8, 2): a(f"v_pk_add_f32 {vr(r+e,2)}, {vr(r+e,2)}, {vr(r+8+e,2)}\nv_pk_add_f32 {vr(r+16+e,2)}, {vr(r+16+e,2)}, {vr(r+24+e,2)}")
        for e in range(0, 8, 2): a(f"v_pk_add_f32 {vr(r+e,2)}, {vr(r+e,2)}, {vr(r+16+e,2)}")
        for e in range(4): a(f"v_cvt_pk_bf16_f32 v{r+8+e}, v{r+2*e}, v{r+2*e+1}")
        a(f"buffer_store_dwordx4 {vr(r+8,4)}, v{O_+i}, s[4:7], 0 offen")
    if opt.get("stamps"): a("s_waitcnt vmcnt(0)")
    stamp(a, 7, opt)
    stamp_out(a, opt)

def gen(a, opt):
    a(f".globl {KN}\n.p2align 8\n.type {KN},@function\n{KN}:")
    stamp(a, 0, opt)
    if opt.get("stamps"): a("s_memrealtime s[100:101]")
    a("s_cmp_ge_u32 s2, 256\ns_cbranch_scc1 Lend")
    a("s_load_dwordx8 s[36:43], s[0:1], 0\ns_load_dwordx8 s[44:51], s[0:1], 32\ns_load_dwordx4 s[52:55], s[0:1], 64")
    a("s_getpc_b64 s[58:59]\nLpc:\ns_lshl_b32 s57, s2, 2\ns_add_u32 s57, s57, Ltab-Lpc\ns_load_dword s56, s[58:59], s57")
    a("v_lshlrev_b32 v30, 7, v0\nv_min_u32 v30, Ltab-Lpc, v30\nglobal_load_dword v103, v30, s[58:59]")
    a(f"""v_lshrrev_b32 v{VC}, 6, v0
v_and_b32 v{VL}, 63, v0
v_readfirstlane_b32 s20, v{VC}
v_lshrrev_b32 v{VR_}, 4, v{VL}
v_and_b32 v{VC}, 15, v0
s_and_b32 s60, s2, 7
s_lshr_b32 s61, s2, 3
s_lshr_b32 s62, s60, 2
s_and_b32 s63, s60, 3
s_lshr_b32 s64, s20, 1
s_and_b32 s65, s20, 1
s_cmp_ge_u32 s61, 18
s_cbranch_scc1 LdecF
s_mov_b32 s21, 1
s_mul_i32 s22, s62, 9
s_lshr_b32 s57, s61, 1
s_add_u32 s22, s22, s57
s_lshl_b32 s23, s63, 1
s_and_b32 s57, s61, 1
s_add_u32 s23, s23, s57
s_mul_i32 s71, s22, 114
s_sub_u32 s71, s71, 14
s_mov_b32 s31, {64*3840}
s_lshl_b32 s70, s22, 3
s_add_u32 s70, s70, s23
s_add_u32 s70, s70, 112
s_branch Ldec2
LdecF:
s_mov_b32 s21, 0
s_mul_i32 s57, s63, 14
s_add_u32 s57, s57, s61
s_sub_u32 s57, s57, 18
s_lshr_b32 s23, s57, 3
s_and_b32 s57, s57, 7
s_lshl_b32 s22, s62, 3
s_add_u32 s22, s22, s57
s_lshl_b32 s71, s22, 7
s_mov_b32 s31, {64*3456}
s_mul_i32 s70, s22, 7
s_add_u32 s70, s70, s23
Ldec2:
s_mov_b32 s24, 0
s_mov_b32 s25, 0
s_mov_b32 s26, 128
s_lshl_b32 s33, s20, 12
s_mov_b32 s27, s33
s_add_u32 s32, s33, {3*SLOT}
s_add_u32 s34, s33, 16384""")
    t = 96
    a(f"""s_lshl_b32 s57, s65, 6
s_add_u32 s57, s57, s64
s_add_u32 s57, s57, s71
s_movk_i32 s58, 2047
s_movk_i32 s59, 1280
v_lshrrev_b32 v{t}, 2, v{VL}
v_and_b32 v{t}, 14, v{t}
v_add_u32 v{t}, s57, v{t}
v_and_b32 v{t+1}, 7, v{VL}
v_xor_b32 v{t+1}, v{t+1}, v{VR_}
v_lshlrev_b32 v{t+1}, 4, v{t+1}
v_xor_b32 v{t+2}, 64, v{t+1}""")
    for j in range(4):
        a(f"""v_add_u32 v{t+3}, {16*j}, v{t}
v_med3_i32 v{t+3}, v{t+3}, 0, s58
v_mad_u32_u24 v{t+3}, v{t+3}, s59, v{t+1+(j&1)}
v_add_u32 v{VDX+j}, {4096-1024*j}, v{t+3}""")
    a(f"""v_lshrrev_b32 v{t}, 5, v{VL}
v_and_b32 v{t+1}, 31, v{VL}
v_lshlrev_b32 v{t+2}, 1, v{t}
v_xor_b32 v{t+1}, v{t+1}, v{t+2}
s_cmp_eq_u32 s21, 0
s_cbranch_scc1 LroleF""")
    rdx = f"""s_lshl_b32 s57, s64, 13
v_lshl_add_u32 v{t}, v{VC}, 7, s57
v_lshrrev_b32 v{t+1}, 1, v{VC}
v_xor_b32 v{t+1}, v{t+1}, v{VR_}
v_lshl_add_u32 v{VXA}, v{t+1}, 4, v{t}
v_xor_b32 v{VXA+1}, 64, v{VXA}
v_bfe_u32 v{t+3}, v{VL}, 2, 2
v_lshl_add_u32 v{T0_}, v{VR_}, 3, v{t+3}
v_lshlrev_b32 v{T0_}, 9, v{T0_}
v_add_u32 v{T0_}, 16384, v{T0_}
v_and_b32 v{T0_+1}, 1, v{VR_}
v_lshl_add_u32 v{T0_+1}, v{T0_+1}, 2, v{t+3}
v_lshlrev_b32 v{T0_+1}, 5, v{T0_+1}""".split("\n")
    def srds(wlo, wbytes):
        a(f"""s_waitcnt lgkmcnt(0)
s_sub_u32 s4, s36, 4096
s_subb_u32 s5, s37, 0
s_mov_b32 s6, {2048*1280+4096}
s_mov_b32 s7, 0x20000
s_sub_u32 s8, s{wlo}, 4096
s_subb_u32 s9, s{wlo+1}, 0
s_mov_b32 s10, {wbytes+4096}
s_mov_b32 s11, 0x20000""")
    srd2 = f"""s_mov_b32 s12, s54
s_mov_b32 s13, s55
s_mov_b32 s14, {WSREC}
s_mov_b32 s15, 0x20000
s_mov_b32 s72, s52
s_mov_b32 s73, s53
s_mov_b32 s74, 256
s_mov_b32 s75, 0x20000""".split("\n")
    def wdma(rs, colf):
        a(f"v_mad_u32_u24 v{t}, v{t}, s59, s57" if False else f"v_mul_u32_u24 v{t}, {rs}, v{t}\nv_add_u32 v{t}, s57, v{t}")
        for var in range(4):
            x = 4 * (var & 1) + 8 * (var >> 1)
            colf(x)
            for j in range(8):
                if (j & 1) + 2 * (j >> 2) == var: a(f"v_add_u32 v{VDW+j}, {2*j*rs - 1024*(j&3)}, v{t+2}")
    a(f"s_mul_i32 s57, s20, {16*3840}\ns_mul_i32 s58, s23, 160\ns_add_u32 s57, s57, s58\ns_add_u32 s57, s57, 4096\ns_movk_i32 s58, 70")
    def colA(x):
        a(f"""v_xor_b32 v{t+2}, {x}, v{t+1}
v_min_u32 v{t+2}, 29, v{t+2}
v_mul_u32_u24 v{t+3}, 26, v{t+2}
v_lshrrev_b32 v{t+3}, 8, v{t+3}
v_mad_u32_u24 v{t+2}, v{t+3}, s58, v{t+2}
v_lshl_add_u32 v{t+2}, v{t+2}, 4, v{t}""")
    wdma(3840, colA)
    srds(38, 640 * 3840)
    post = p1_loop(a, "A", srd2 + rdx + att_shadow() + common_shadow(), opt)
    stamp(a, 2, opt)
    att_epilogue(a, post, opt)
    a("s_branch Lp2")
    switch_block(a, "A")
    a("LroleF:")
    a(f"s_mul_i32 s57, s20, {16*3456}\ns_add_u32 s57, s57, 4096\ns_lshl_b32 s58, s23, 9")
    def colF(x):
        a(f"""v_xor_b32 v{t+2}, {x}, v{t+1}
v_lshl_add_u32 v{t+2}, v{t+2}, 4, s58
v_min_u32 v{t+2}, 3440, v{t+2}
v_add_u32 v{t+2}, v{t+2}, v{t}""")
    wdma(3456, colF)
    srds(44, 640 * 3456)
    a("s_lshl_b32 s57, s23, 1\ns_add_u32 s57, s57, s65\ns_cmp_eq_u32 s57, 13\ns_cbranch_scc1 LroleG")
    post = p1_loop(a, "F", srd2 + rdx + ffn_shadow("F") + common_shadow(), opt)
    stamp(a, 2, opt)
    ffn_epilogue(a, "F", post, opt)
    a("s_branch Lp2")
    switch_block(a, "F")
    a("LroleG:")
    for x in srd2: a(x)
    a(f"""s_mov_b32 s76, s48
s_mov_b32 s77, s49
s_mov_b32 s78, 1280
s_mov_b32 s79, 0x20000
s_add_u32 m0, s33, {SPARE}
v_lshlrev_b32 v{t}, 4, v{VL}
buffer_load_dwordx4 v{t}, s[76:79], 0 offen lds
buffer_load_dwordx4 v{t}, s[76:79], 0 offen offset:1024 lds""")
    snapshot_issue(a)
    post = p1_loop(a, "G", rdx + ffn_shadow("G") + common_shadow(), opt)
    stamp(a, 2, opt)
    ffn_epilogue(a, "G", post, opt)
    a("s_branch Lp2")
    switch_block(a, "G")
    phase2(a, opt)
    a("Lend:\ns_endpgm")
    a(".p2align 6\n.type Ltab,@object\n.size Ltab, 1024\nLtab:")
    tab = p2_table()
    for i in range(0, 256, 8): a(".long " + ", ".join("0x%08x" % v for v in tab[i:i+8]))

HEADER = open("cdna_kernels/%s.s.ref" % NAME).read().split("; Override launch")[0]
def generate(opt):
    a = Asm()
    hdr = HEADER + "; @launch grid=(256,1,1) block=(256,1,1) lds=163840\n"
    a('.amdgcn_target "amdgcn-amd-amdhsa--gfx950"\n.text')
    gen(a, opt)
    return hdr + a.text() + kd(KN, 512, 256)

if __name__ == "__main__":
    import json
    opt = json.loads(sys.argv[2]) if len(sys.argv) > 2 else {}
    open(sys.argv[1], "w").write(generate(opt))
```
